```python
import torch

def _softmax(x, axis=-1):
    return torch.softmax(x, dim=axis)
def _gelu(x):
    return torch.nn.functional.gelu(x, approximate="tanh")
def _silu(x):
    return torch.nn.functional.silu(x)
def _sigmoid(x):
    return torch.sigmoid(x)
def _layernorm(x, axis=-1, eps=1e-5):
    m = x.mean(dim=axis, keepdim=True)
    v = x.var(dim=axis, keepdim=True, unbiased=False)
    return (x - m) / torch.sqrt(v + eps)
def _scatter_add(tgt, idx, src, axis=0):
    return tgt.clone().index_add_(axis, idx, src)
def _segment_sum(src, seg, n):
    out = torch.zeros((n,) + src.shape[1:], dtype=src.dtype)
    return out.index_add_(0, seg, src)
def _pad(x, pw):
    flat = tuple(v for pair in reversed(pw) for v in pair)
    return torch.nn.functional.pad(x, flat)

kernel_name = 'gather_scatter__cheap_equivariant_egnn__graph'

def setup_inputs():

    _w = (lambda a: (lambda t: t.to(torch.bfloat16) if t.is_floating_point() else t)(torch.as_tensor(a)))
    N, deg, D, De = 12500, 32, 128, max(0, 1)
    E = N * deg
    return {
        "h": _w((lambda *s: torch.randn(*s, dtype=torch.bfloat16) * 0.1)(N, D)),
        "pos": _w((lambda *s: torch.randn(*s, dtype=torch.bfloat16) * 0.8)(N, 3)),
        "e_attr": _w((lambda *s: torch.randn(*s, dtype=torch.bfloat16) * 0.8)(E, De)),
        "src": _w((lambda lo, hi, *s: torch.randint(lo, hi, s))(0, N, E).to(torch.int64)),
        "dst": _w((lambda lo, hi, *s: torch.randint(lo, hi, s))(0, N, E).to(torch.int64)),
        "w_e": _w(0.1 * (lambda *s: torch.randn(*s, dtype=torch.bfloat16) * 0.8)(2 * D + 1 + De, D)),
        "w_x": _w(0.1 * (lambda *s: torch.randn(*s, dtype=torch.bfloat16) * 0.1)(D, 1)),
        "w_h": _w(0.1 * (lambda *s: torch.randn(*s, dtype=torch.bfloat16) * 0.1)(2 * D, D)),
    }

def reference(h, pos, e_attr, src, dst, w_e, w_x, w_h):
    N, D = h.shape[0], h.shape[1]
    diff = pos[dst] - pos[src]
    dist2 = torch.sum(diff * diff, axis=-1, keepdims=True)
    e_in = torch.concatenate([h[dst], h[src], dist2, e_attr], axis=-1)
    m_ij = _silu(e_in @ w_e)
    coord_scale = m_ij @ w_x
    pos_new = pos + _segment_sum(diff * coord_scale, dst, N)
    m_i = _segment_sum(m_ij, dst, N)
    h_new = h + _silu(torch.concatenate([h, m_i], axis=-1) @ w_h)
    return h_new, pos_new
```

```python
NAME = "gather_scatter__cheap_equivariant_egnn__graph"
HEAD = open("cdna_kernels/%s.s.ref" % NAME).read().split("; Override launch geometry")[0]

def kernel(name, body):
    return f""".globl {name}
.p2align 8
.type {name},@function
{name}:
{body}
"""

def desc(name, nv, ns=96, acc=None):
    acc = acc or ((nv + 3) // 4) * 4
    return f""".p2align 6
.amdhsa_kernel {name}
  .amdhsa_next_free_vgpr {nv}
  .amdhsa_next_free_sgpr {ns}
  .amdhsa_accum_offset {acc}
  .amdhsa_group_segment_fixed_size 0
  .amdhsa_kernarg_size 88
  .amdhsa_user_sgpr_count 2
  .amdhsa_user_sgpr_kernarg_segment_ptr 1
  .amdhsa_system_sgpr_workgroup_id_x 1
  .amdhsa_float_denorm_mode_32 3
.end_amdhsa_kernel
"""

def assemble(kernels):
    s = HEAD
    for (n, g, b, l, *_r) in kernels:
        s += f"; @launch kernel={n} grid=({g},1,1) block=({b},1,1) lds={l}\n"
    s += '.amdgcn_target "amdgcn-amd-amdhsa--gfx950"\n.text\n'
    seen = []
    for k in kernels:
        if k[0] in seen: continue
        seen.append(k[0]); s += kernel(k[0], k[4])
    s += '.section .rodata,"a"\n'
    seen = []
    for k in kernels:
        if k[0] in seen: continue
        seen.append(k[0]); s += desc(k[0], k[5], k[6])
    return s

def srd(d, base, nbytes, off=0, stride=0):
    s = ""
    if off:
        s += f"    s_add_u32 s{d}, s{base}, {off}\n    s_addc_u32 s{d+1}, s{base+1}, 0\n"
    else:
        s += f"    s_mov_b32 s{d}, s{base}\n    s_mov_b32 s{d+1}, s{base+1}\n"
    if stride:
        s += f"    s_and_b32 s{d+1}, s{d+1}, 0xffff\n    s_or_b32 s{d+1}, s{d+1}, {stride << 16}\n"
    s += f"    s_mov_b32 s{d+2}, {nbytes}\n    s_mov_b32 s{d+3}, 0x20000\n"
    return s
```

```python
from common import *
import sys
N=12500; E=400000
AB=0; ACC=0x2000000; PACC=0x2800000
LOG2E=0x3fb8aa3b
def kA():
    s = """
    s_cmp_ge_u32 s2, 256
    s_cbranch_scc1 LA_end
    s_load_dwordx2 s[4:5], s[0:1], 0      ; h
    s_load_dwordx2 s[6:7], s[0:1], 40     ; w_e
    s_load_dwordx2 s[8:9], s[0:1], 56     ; w_h
    s_load_dwordx2 s[10:11], s[0:1], 80   ; ws
    v_lshrrev_b32 v1, 7, v0
    s_nop 1
    v_readfirstlane_b32 s3, v1
    s_waitcnt lgkmcnt(0)
    s_cmp_eq_u32 s3, 2
    s_cselect_b32 s12, s8, s6
    s_cselect_b32 s13, s9, s7
    s_mov_b32 s14, 65536
    s_mov_b32 s15, 0x20000
    s_cmp_eq_u32 s3, 1
    s_cselect_b32 s16, 32768, 0
    v_and_b32 v1, 127, v0
    v_lshlrev_b32 v1, 1, v1
    v_add_u32 v1, s16, v1
"""
    s += srd(20, 10, 0x3000000)
    for k in range(128):
        s += f"    s_mov_b32 s16, {k*256}\n    buffer_load_ushort v{8+k}, v1, s[12:15], s16 offen\n"
    s += "    s_waitcnt vmcnt(0)\n"
    for k in range(128):
        s += f"    v_lshlrev_b32 v{8+k}, 16, v{8+k}\n"
    s += f"""
    s_mul_i32 s17, s2, 49
    s_add_u32 s18, s17, 49
    s_min_u32 s18, s18, {N}
    v_lshlrev_b32 v2, 2, v0
    v_mov_b32 v5, 0
LA_loop:
    s_cmp_ge_u32 s17, s18
    s_cbranch_scc1 LA_end
    s_lshl_b32 s19, s17, 8
    s_add_u32 s24, s4, s19
    s_addc_u32 s25, s5, 0
    s_load_dwordx16 s[28:43], s[24:25], 0
    s_load_dwordx16 s[44:59], s[24:25], 64
    s_load_dwordx16 s[60:75], s[24:25], 128
    s_load_dwordx16 s[76:91], s[24:25], 192
    v_mov_b32 v3, 0
    s_waitcnt lgkmcnt(0)
"""
    for k in range(64):
        s += f"    s_lshl_b32 s26, s{28+k}, 16\n    s_and_b32 s27, s{28+k}, 0xffff0000\n"
        s += f"    v_fmac_f32 v3, s26, v{8+2*k}\n    v_fmac_f32 v3, s27, v{9+2*k}\n"
    s += f"""
    s_mul_i32 s19, s17, 1536
    buffer_store_dword v3, v2, s[20:23], s19 offen
    v_cmp_gt_u32 vcc, 128, v0
    s_and_saveexec_b64 s[92:93], vcc
    s_cbranch_execz LA_z1
    s_lshl_b32 s19, s17, 9
    s_add_u32 s19, s19, {ACC}
    buffer_store_dword v5, v2, s[20:23], s19 offen
LA_z1:
    s_mov_b64 exec, s[92:93]
    v_cmp_gt_u32 vcc, 4, v0
    s_and_saveexec_b64 s[92:93], vcc
    s_cbranch_execz LA_z2
    s_lshl_b32 s19, s17, 4
    s_add_u32 s19, s19, {PACC}
    buffer_store_dword v5, v2, s[20:23], s19 offen
LA_z2:
    s_mov_b64 exec, s[92:93]
    s_add_u32 s17, s17, 1
    s_branch LA_loop
LA_end:
    s_endpgm
"""
    return s.replace("v_cmp_gt_u32 vcc, 128, v0","v_cmp_gt_u32 vcc, 0x80, v0")
def kB():
    s = f"""
    s_cmp_ge_u32 s2, 2000
    s_cbranch_scc1 LB_end
    s_load_dwordx4 s[4:7], s[0:1], 8
    s_load_dwordx4 s[8:11], s[0:1], 24
    s_load_dwordx4 s[12:15], s[0:1], 40   ; w_e, w_x
    s_load_dwordx2 s[16:17], s[0:1], 80
    v_lshrrev_b32 v1, 6, v0
    v_and_b32 v0, 63, v0
    s_nop 1
    v_readfirstlane_b32 s3, v1
    s_waitcnt lgkmcnt(0)
"""
    s += srd(20,16,0x3000000)+srd(24,4,75000)+srd(28,6,800000)+srd(32,12,258*256)+srd(36,14,256)
    s += f"""
    s_lshl_b32 s18, s2, 2
    s_add_u32 s18, s18, s3
    s_mul_i32 s18, s18, 50
    s_add_u32 s19, s18, 50
    v_lshlrev_b32 v1, 1, v0     ; lane*2
    v_lshlrev_b32 v2, 2, v0     ; lane*4
    s_mov_b32 s40, 65536
    buffer_load_ushort v3, v1, s[32:35], s40 offen
    buffer_load_ushort v4, v1, s[32:35], s40 offen offset:128
    buffer_load_ushort v5, v1, s[32:35], s40 offen offset:256
    buffer_load_ushort v6, v1, s[32:35], s40 offen offset:384
    buffer_load_ushort v7, v1, s[36:39], 0 offen
    buffer_load_ushort v8, v1, s[36:39], 0 offen offset:128
    v_mov_b32 v9, 0
    s_waitcnt vmcnt(0)
    v_lshlrev_b32 v3, 16, v3
    v_lshlrev_b32 v4, 16, v4
    v_lshlrev_b32 v5, 16, v5
    v_lshlrev_b32 v6, 16, v6
    v_lshlrev_b32 v7, 16, v7
    v_lshlrev_b32 v8, 16, v8
LB_loop:
    s_lshl_b32 s40, s18, 2
    s_load_dword s41, s[8:9], s40
    s_load_dword s42, s[10:11], s40
    s_lshl_b32 s43, s18, 1
    buffer_load_ushort v10, v9, s[28:31], s43 offen
    s_waitcnt lgkmcnt(0)
    s_mul_i32 s44, s41, 6
    s_mul_i32 s45, s42, 6
    buffer_load_ushort v11, v9, s[24:27], s44 offen
    buffer_load_ushort v12, v9, s[24:27], s44 offen offset:2
    buffer_load_ushort v13, v9, s[24:27], s44 offen offset:4
    buffer_load_ushort v14, v9, s[24:27], s45 offen
    buffer_load_ushort v15, v9, s[24:27], s45 offen offset:2
    buffer_load_ushort v16, v9, s[24:27], s45 offen offset:4
    s_mul_i32 s44, s41, 1536
    s_mul_i32 s45, s42, 1536
    buffer_load_dword v17, v2, s[20:23], s45 offen
    buffer_load_dword v18, v2, s[20:23], s45 offen offset:256
    buffer_load_dword v19, v2, s[20:23], s44 offen offset:512
    buffer_load_dword v20, v2, s[20:23], s44 offen offset:768
    s_waitcnt vmcnt(0)
"""
    for i in range(10,17): s += f"    v_lshlrev_b32 v{i}, 16, v{i}\n"
    for i in range(3):
        s += f"    v_sub_f32 v{11+i}, v{14+i}, v{11+i}\n    v_cvt_pk_bf16_f32 v{11+i}, v{11+i}, v{11+i}\n    v_lshlrev_b32 v{11+i}, 16, v{11+i}\n"
    s += f"""
    v_mul_f32 v14, v11, v11
    v_fmac_f32 v14, v12, v12
    v_fmac_f32 v14, v13, v13
    v_add_f32 v17, v17, v19
    v_add_f32 v18, v18, v20
    v_fmac_f32 v17, v14, v3
    v_fmac_f32 v18, v14, v4
    v_fmac_f32 v17, v10, v5
    v_fmac_f32 v18, v10, v6
    v_mul_f32 v19, 0xbfb8aa3b, v17
    v_mul_f32 v20, 0xbfb8aa3b, v18
    v_exp_f32 v19, v19
    v_exp_f32 v20, v20
    s_nop 0
    v_add_f32 v19, 1.0, v19
    v_add_f32 v20, 1.0, v20
    v_rcp_f32 v19, v19
    v_rcp_f32 v20, v20
    s_nop 0
    v_mul_f32 v17, v17, v19
    v_mul_f32 v18, v18, v20
    s_lshl_b32 s44, s42, 9
    s_add_u32 s44, s44, {ACC}
    buffer_atomic_add_f32 v17, v2, s[20:23], s44 offen
    buffer_atomic_add_f32 v18, v2, s[20:23], s44 offen offset:256
    v_mul_f32 v21, v17, v7
    v_fmac_f32 v21, v18, v8
"""
    for x in (1,2,4,8,16,32):
        s += f"    v_xor_b32 v22, {x*4}, v2\n    ds_bpermute_b32 v22, v22, v21\n    s_waitcnt lgkmcnt(0)\n    v_add_f32 v21, v21, v22\n".replace("v_xor_b32 v22, 128,","v_xor_b32 v22, 0x80,")
    s += f"""
    v_cmp_eq_u32 vcc, 1, v0
    s_nop 1
    v_cndmask_b32 v11, v11, v12, vcc
    v_cmp_eq_u32 vcc, 2, v0
    s_nop 1
    v_cndmask_b32 v11, v11, v13, vcc
    v_mul_f32 v11, v11, v21
    s_lshl_b32 s44, s42, 4
    s_add_u32 s44, s44, {PACC}
    s_mov_b64 exec, 7
    buffer_atomic_add_f32 v11, v2, s[20:23], s44 offen
    s_mov_b64 exec, -1
    s_add_u32 s18, s18, 1
    s_cmp_lt_u32 s18, s19
    s_cbranch_scc1 LB_loop
LB_end:
    s_endpgm
"""
    return s
def kC():
    s = f"""
    s_cmp_ge_u32 s2, 500
    s_cbranch_scc1 LC_end
    s_load_dwordx4 s[4:7], s[0:1], 0      ; h,pos
    s_load_dwordx4 s[8:11], s[0:1], 56     ; w_h, out
    s_load_dwordx2 s[12:13], s[0:1], 80   ; ws
    s_waitcnt lgkmcnt(0)
"""
    s += srd(16,8,65536)+srd(20,12,0x3000000)+srd(24,4,3200000)+srd(92,6,75000)+srd(96,10,3275000)
    s += "    v_lshlrev_b32 v1, 1, v0\n    v_lshlrev_b32 v2, 2, v0\n"
    for k in range(128):
        s += f"    s_mov_b32 s14, {32768+k*256}\n    buffer_load_ushort v{8+k}, v1, s[16:19], s14 offen\n"
    s += "    s_waitcnt vmcnt(0)\n"
    for k in range(128):
        s += f"    v_lshlrev_b32 v{8+k}, 16, v{8+k}\n"
    s += f"""
    s_mul_i32 s3, s2, 25
    s_add_u32 s8, s3, 25
LC_loop:
    s_mul_i32 s14, s3, 1536
    buffer_load_dword v3, v2, s[20:23], s14 offen offset:1024
    s_lshl_b32 s14, s3, 8
    buffer_load_ushort v4, v1, s[24:27], s14 offen
    s_mul_i32 s15, s3, 6
    buffer_load_ushort v6, v1, s[92:95], s15 offen
    s_lshl_b32 s9, s3, 4
    s_add_u32 s9, s9, {PACC}
    buffer_load_dword v7, v2, s[20:23], s9 offen
    s_lshl_b32 s9, s3, 9
    s_add_u32 s9, s9, {ACC}
    s_add_u32 s4, s12, s9
    s_addc_u32 s5, s13, 0
    s_waitcnt vmcnt(0)
"""
    for hf in range(2):
        for j in range(4): s += f"    s_load_dwordx16 s[{28+16*j}:{43+16*j}], s[4:5], {hf*256+64*j}\n"
        s += "    s_waitcnt lgkmcnt(0)\n"
        for k in range(64): s += f"    v_fmac_f32 v3, s{28+k}, v{8+64*hf+k}\n"
    s += f"""
    v_mul_f32 v5, 0xbfb8aa3b, v3
    v_exp_f32 v5, v5
    s_nop 0
    v_add_f32 v5, 1.0, v5
    v_rcp_f32 v5, v5
    v_lshlrev_b32 v4, 16, v4
    v_fmac_f32 v4, v3, v5
    v_cvt_pk_bf16_f32 v4, v4, v4
    buffer_store_short v4, v1, s[96:99], s14 offen
    v_lshlrev_b32 v6, 16, v6
    v_add_f32 v6, v6, v7
    v_cvt_pk_bf16_f32 v6, v6, v6
    v_cmp_gt_u32 vcc, 3, v0
    s_and_saveexec_b64 s[6:7], vcc
    s_cbranch_execz LC_z
    s_add_u32 s15, s15, 3200000
    buffer_store_short v6, v1, s[96:99], s15 offen
LC_z:
    s_mov_b64 exec, s[6:7]
    s_add_u32 s3, s3, 1
    s_cmp_lt_u32 s3, s8
    s_cbranch_scc1 LC_loop
LC_end:
    s_endpgm
"""
    return s
KS = [("na_kernel",256,384,0,kA(),136,96),("nb_kernel",2000,256,0,kB(),24,96),("nc_kernel",500,128,0,kC(),136,102)]
if __name__=="__main__":
    open(sys.argv[1],"w").write(assemble(KS))
```

```python
from common import *
import naive, sys
ST=0x6000000
def stamps(k, lab):
    s = "    s_waitcnt lgkmcnt(0)\n"
    s += f"    v_cmp_eq_u32 vcc, 0, v0\n    s_and_saveexec_b64 s[30:31], vcc\n    s_cbranch_execz {lab}\n"
    s += f"    s_lshl_b32 s3, s2, 2\n    s_add_u32 s3, s3, {ST+k*8192}\n    v_mov_b32 v1, s3\n"
    for i in range(4):
        s += f"    v_mov_b32 v2, s{40+2*i}\n    buffer_store_dword v2, v1, s[12:15], 0 offen offset:{1024*i}\n"
    s += f"{lab}:\n    s_endpgm\n"
    return s
def p1(loadh, nst16, nst8, flag, wsoff):
    s = """
    s_cmp_ge_u32 s2, 256
    s_cbranch_scc1 LP1e
    s_memrealtime s[40:41]
    s_load_dwordx2 s[4:5], s[0:1], 0
    s_load_dwordx2 s[6:7], s[0:1], 16
    s_load_dwordx4 s[8:11], s[0:1], 24
    s_load_dwordx2 s[16:17], s[0:1], 80
    s_waitcnt lgkmcnt(0)
"""
    s += srd(12,16,0x10000000)+srd(20,4,3200000)+srd(24,6,800000)+srd(32,8,1600000)+srd(36,10,1600000)
    s += """
    s_mul_i32 s3, s2, 782
    v_add_u32 v1, s3, v0
    v_cmp_gt_u32 vcc, 0x30e, v0
    v_mov_b32 v2, 0x7000000
    s_nop 1
    v_cndmask_b32 v1, v2, v1, vcc
    v_lshlrev_b32 v2, 2, v1
    v_lshlrev_b32 v3, 3, v1
    v_lshlrev_b32 v4, 4, v1
    buffer_load_dwordx2 v[8:9], v3, s[36:39], 0 offen
    buffer_load_dwordx2 v[10:11], v3, s[32:35], 0 offen
    buffer_load_dword v12, v2, s[24:27], 0 offen
"""
    if loadh: s += "    buffer_load_dwordx4 v[16:19], v4, s[20:23], 0 offen\n"
    s += "    s_waitcnt vmcnt(0)\n    s_barrier\n    s_memrealtime s[42:43]\n    v_mov_b32 v8, 0\n"
    for i in range(nst16):
        s += f"    s_mov_b32 s18, {wsoff+i*0x400000}\n    buffer_store_dwordx4 v[8:11], v4, s[12:15], s18 offen {flag}\n"
    for i in range(nst8):
        s += f"    s_mov_b32 s18, {wsoff+(nst16+i)*0x400000}\n    buffer_store_dwordx2 v[8:9], v3, s[12:15], s18 offen {flag}\n"
    s += "    s_waitcnt vmcnt(0)\n    s_barrier\n    s_memrealtime s[44:45]\n    s_memrealtime s[46:47]\n" + stamps(0,"LP1e")
    return s
def p2(wsoff):
    s = """
    s_cmp_ge_u32 s2, 256
    s_cbranch_scc1 LP2e
    s_memrealtime s[40:41]
    s_load_dwordx2 s[16:17], s[0:1], 80
    s_waitcnt lgkmcnt(0)
"""
    s += srd(12,16,0x10000000)
    s += f"""
    ; 128 segments x 8 threads x 8B
    v_lshrrev_b32 v1, 3, v0
    v_mul_u32_u24 v1, 12504, v1
    v_and_b32 v2, 7, v0
    v_lshl_add_u32 v1, v2, 3, v1
    s_mul_i32 s3, s2, 24
    s_add_u32 s3, s3, {wsoff}
    buffer_load_dword v3, v1, s[12:15], s3 offen
    s_waitcnt vmcnt(0)
    s_barrier
    s_memrealtime s[42:43]
    v_and_b32 v3, 0, v3
    v_add_u32 v1, v1, v3
    s_add_u32 s3, s3, 6144
    buffer_load_dwordx2 v[4:5], v1, s[12:15], s3 offen
    s_waitcnt vmcnt(0)
    s_barrier
    s_memrealtime s[44:45]
    s_memrealtime s[46:47]
""" + stamps(1,"LP2e")
    return s
def p3(ka, ca, kb, cb, amp, useminA=False):
    s = """
    s_cmp_ge_u32 s2, 1
    s_cbranch_scc1 LP3e
    s_load_dwordx2 s[16:17], s[0:1], 80
    s_waitcnt lgkmcnt(0)
"""
    s += srd(12,16,0x10000000)
    op = "min" if useminA else "max"
    s += f"""
    v_lshlrev_b32 v1, 4, v0
    s_mov_b32 s3, {ST+ka*8192+ca*1024}
    buffer_load_dwordx4 v[4:7], v1, s[12:15], s3 offen
    s_mov_b32 s3, {ST+kb*8192+cb*1024}
    buffer_load_dwordx4 v[8:11], v1, s[12:15], s3 offen
    s_waitcnt vmcnt(0)
    v_{op}_u32 v4, v4, v5
    v_{op}_u32 v6, v6, v7
    v_{op}_u32 v4, v4, v6
    v_min_u32 v8, v8, v9
    v_min_u32 v10, v10, v11
    v_min_u32 v8, v8, v10
    s_nop 1
    v_readlane_b32 s20, v4, 0
    v_readlane_b32 s21, v8, 0
"""
    for l in range(1,64):
        s += f"    v_readlane_b32 s22, v4, {l}\n    v_readlane_b32 s23, v8, {l}\n    s_nop 0\n    s_{op}_u32 s20, s20, s22\n    s_min_u32 s21, s21, s23\n"
    s += f"""
    s_sub_u32 s20, s20, s21
    s_min_u32 s20, s20, 5000
    s_mul_i32 s20, s20, {amp}
    s_memrealtime s[24:25]
    s_waitcnt lgkmcnt(0)
LP3w:
    s_memrealtime s[26:27]
    s_waitcnt lgkmcnt(0)
    s_sub_u32 s28, s26, s24
    s_cmp_lt_u32 s28, s20
    s_cbranch_scc1 LP3w
LP3e:
    s_endpgm
"""
    return s
def mk(fn, loadh, n16, n8, flag, meas, amp=50, wsoff=0x8000000):
    ks = [("pa_kernel",256,1024,0,p1(loadh,n16,n8,flag,wsoff),32,96),("pb_kernel",256,1024,0,p2(wsoff),32,96),("pc_kernel",1,64,0,p3(*meas,amp),32,96)] + naive.KS
    open(fn,"w").write(assemble(ks))
if __name__=="__main__":
    which = sys.argv[1]
    d="probe/"
    import os; os.makedirs(d,exist_ok=True)
    if which=="a":
        mk(d+"p0.s",0,1,0,"",(0,1,0,0),amp=0)
        mk(d+"p1.s",0,1,0,"",(0,1,0,0))
        mk(d+"p2.s",1,1,0,"",(0,1,0,0))
        mk(d+"p3.s",0,0,1,"",(1,0,0,0))
        mk(d+"p4.s",0,1,0,"",(1,0,0,0))
        mk(d+"p5.s",0,2,0,"",(1,0,0,0))
    if which=="b":
        mk(d+"p0.s",0,3,0,"",(1,0,0,0))
        mk(d+"p1.s",0,1,0,"sc0 sc1",(1,0,0,0))
        mk(d+"p2.s",0,3,0,"sc0 sc1",(1,0,0,0))
        mk(d+"p3.s",0,2,0,"",(1,0,0,0),wsoff=0xE000000)
        mk(d+"p4.s",0,1,0,"",(1,1,1,0))
        mk(d+"p5.s",0,1,0,"",(1,2,1,0))
```

```python
import re
TRANS = ("v_exp_f32","v_rcp_f32","v_log_f32","v_rsq_f32","v_sqrt_f32","v_sin_f32","v_cos_f32")
def regs(tok):
    tok = tok.strip().lstrip("-").replace("abs(","").rstrip(")")
    m = re.fullmatch(r"([vsa])\[(\d+):(\d+)\]", tok)
    if m: return {f"{m.group(1)}{i}" for i in range(int(m.group(2)), int(m.group(3))+1)}
    if re.fullmatch(r"[vsa]\d+", tok): return {tok}
    if tok in ("vcc","exec","m0"): return {tok}
    return set()
def parse(line):
    line = line.split(";")[0].strip()
    if not line or line.endswith(":") or line.startswith("."): return None
    p = line.split(None,1); op = p[0]
    rest = p[1] if len(p)>1 else ""
    ops = [o.strip() for o in re.split(r",\s*(?![^\[]*\])", rest)]
    if ops and " " in ops[-1]:
        last = ops[-1].split(); ops[-1] = last[0]; mods = " ".join(last[1:])
    else: mods = ""
    d = dict(op=op, line=line, mods=mods, w=set(), r=set(), kind="other", ws=1)
    R = [regs(o) for o in ops]
    if op=="s_nop": d["ws"]=int(ops[0],0)+1
    if op.startswith("v_mfma"):
        d["kind"]="mfma"; d["w"]=R[0]; d["a"]=R[1]|R[2]; d["c"]=R[3]; d["r"]=R[1]|R[2]|R[3]
        d["passes"]=8 if "32x32" in op else 4
    elif op.startswith("v_"):
        d["kind"]="valu"
        if op.startswith("v_cmp"): d["w"]=R[0]; d["r"]=set().union(*R[1:])
        elif "_co_" in op: d["w"]=R[0]|R[1]; d["r"]=set().union(*R[2:])
        elif op.startswith("v_permlane"): d["w"]=R[0]|R[1]; d["r"]=R[0]|R[1]
        else:
            d["w"]=R[0]; d["r"]=set().union(*R[1:]) if len(R)>1 else set()
            if op.startswith(("v_fmac","v_dot2c","v_writelane")) or "dpp" in op or "row_" in mods or "PRESERVE" in mods: d["r"]|=R[0]
        if op.startswith("v_cmpx"): d["w"]|={"exec"}
        d["trans"]=op.startswith(TRANS); d["dpp"]=("dpp" in op or "row_" in mods or "quad_perm" in mods)
        d["sdwa"]="sdwa" in op and "dst_sel:DWORD" not in mods
    elif op.startswith(("buffer_","global_")):
        d["kind"]="vmem"; allr=set().union(*R)
        lds = " lds" in " "+mods or "load_lds" in op
        if "load" in op and not lds: d["w"]=R[0]; d["r"]=set().union(*R[1:])
        else: d["r"]=allr
        if lds: d["r"]|={"m0"}; d["ldsdma"]=True
        if "store" in op and ("x4" in op or "x3" in op): d["wide"]=R[0] if op.startswith("buffer") else R[1]
    elif op.startswith("ds_"):
        d["kind"]="ds"
        if "read" in op or "rtn" in op or "permute" in op: d["w"]=R[0]; d["r"]=set().union(*R[1:])
        else: d["r"]=set().union(*R)
    elif op.startswith("s_"):
        d["kind"]="salu"
        if op.startswith(("s_cmp","s_cbranch","s_branch","s_waitcnt","s_barrier","s_nop","s_endpgm","s_sleep","s_setprio")): d["r"]=set().union(*R) if R else set()
        else:
            d["w"]=R[0] if R else set(); d["r"]=set().union(*R[1:]) if len(R)>1 else set()
            if "saveexec" in op: d["w"]|={"exec"}
    return d
def need(p, c):
    n=0
    isv=lambda S:{x for x in S if x[0] in "va" and x!="vcc"}
    iss=lambda S:{x for x in S if x[0]=="s" or x=="vcc"}
    if p["kind"]=="valu":
        wv=isv(p["w"]); wsg=iss(p["w"])
        if c["kind"]=="mfma" and wv & c["r"]: n=max(n,2)
        if c["kind"]=="valu":
            if c.get("dpp") and wv & c["r"]: n=max(n,2)
            if c["op"].startswith(("v_readlane","v_readfirstlane")) and wv & c["r"]: n=max(n,1)
            if c["op"].startswith("v_permlane") and wv & c["r"]: n=max(n,2)
            if p.get("trans") and not c.get("trans") and wv & c["r"]: n=max(n,1)
            if p.get("sdwa") and wv & (c["r"]|c["w"]): n=max(n,1)
            if wsg & c["r"]: n=max(n,4 if c["op"].startswith(("v_readlane","v_writelane")) else 2)
            if p["op"].startswith("v_dot") and wv & (c["r"]|c["w"]): n=max(n,3)
            if "exec" in p["w"]:
                if c.get("dpp"): n=max(n,5)
                if c["op"].startswith(("v_readlane","v_readfirstlane","v_writelane","v_permlane")): n=max(n,4)
        if c["kind"]=="mfma" and "exec" in p["w"]: n=max(n,4)
        if c["kind"]=="vmem" and wsg & c["r"]: n=max(n,5)
    if p["kind"]=="mfma":
        P=p["passes"]; big={4:8,8:12}[P]
        if c["kind"]=="mfma":
            if p["w"] & c["a"]: n=max(n,big)
            if p["w"] & c["c"] and not (p["w"]==c["c"] and P==c["passes"]): n=max(n,{4:6,8:10}[P])
            if p["w"] & c["w"] and not (p["w"]==c["w"] and P==c["passes"]): n=max(n,{4:6,8:10}[P])
        elif c["kind"] in ("valu","vmem","ds"):
            if p["w"] & (c["r"]|c["w"]): n=max(n,big)
            if c["kind"]=="valu" and p["c"] & c["w"]: n=max(n,{4:3,8:7}[P])
    if p["kind"]=="vmem" and p.get("wide") and p["wide"] & c["w"]: n=max(n,2)
    if p["kind"]=="salu" and "m0" in p["w"] and c.get("ldsdma"): n=max(n,1)
    return n
def check(text):
    lines = text.split("\n")
    ins=[]; labels={}
    for l in lines:
        t=l.split(";")[0].strip()
        if t.endswith(":"): labels[t[:-1]]=len(ins); continue
        d=parse(l)
        if d: ins.append(d)
    bad=set()
    def walk(i, p, dist, depth):
        while i < len(ins) and dist < 13:
            c=ins[i]
            n=need(p,c)
            if n>dist: bad.add((p["line"],c["line"],n,dist))
            dist+=c["ws"]
            op=c["op"]
            if op=="s_endpgm": return
            if op.startswith(("s_cbranch","s_branch")):
                tgt=labels.get(c["line"].split()[1])
                if tgt is not None and depth<6: walk(tgt,p,dist,depth+1)
                if op=="s_branch": return
            i+=1
    for k,p in enumerate(ins):
        if p["kind"] in ("valu","mfma","vmem") or "m0" in p["w"]:
            walk(k+1,p,0,0)
    return sorted(bad)
if __name__=="__main__":
    import sys
    for b in check(open(sys.argv[1]).read()): print("HAZARD need %d have %d:\n   %s\n   %s"%(b[2],b[3],b[0],b[1]))
```

```python
import sys
from common import HEAD, NAME, srd
import hazard

N = 12500; E = 400000
CH = 1564
CHT = CH // 4
CAP = 288
OHT = 0; GC = 0x80; MORE = 0xA0; NONCE = 0xA4; SLOTC = 0xB0; PAIRC = 0xC0; WX = 0x100
RA = 0x200; WA = RA + 8 * CAP * 16
WR = RA; SORT = WR + 32768
HIST = WA + 8 * CAP * 4; PREF = HIST + 1024; PP = PREF + 1024
HR = PP + 2048; YR = HR + 16384; PR = YR + 16384; LDS = PR + 74 * 1024
STGS = 4352; USTR = 1088
assert SORT + 12544 <= HIST and HR % 256 == 0 and LDS <= 163840 and 16 * STGS <= 74 * 1024
WT = 0; WREC = 0x100000; WBP = 0x500000; WIMG = 0x900000; WST = 0x6000000
NLOG2E = 0xbfb8aa3b; NLN2 = 0xbf317218
LANE, STA, STB, XA, FA0, FA1, AWX, AWS, AIDX, MYN, HOFF = 0, 1, 2, 3, 4, 5, 6, 7, 8, 9, 10
DP = 12; X = 20; Y0 = 24; Y1 = 28; SEL0 = 32; SEL1 = 36; SA = 40; SB = 44; F0 = 48; F1 = 52; T = 56
D0 = 64; D1 = 80; A0 = 96; A1 = 112
sB, sWV = 3, 4
pH, pPOS, pEA, pSRC, pDST, pWE, pWX, pWH, pOUT, pDBG, pWS = 8, 10, 12, 14, 16, 18, 20, 22, 24, 26, 28
rH, rPOS, rWS, rBPW, rBPG, rOUT, rOUTP = 32, 36, 40, 44, 48, 52, 56
sNON, sG, sHALF, sSLOT, sN, sNT, sSTG, sMORE, sEX, sEX2, sCNT, sK1, sK2 = 60, 61, 62, 63, 64, 65, 66, 67, 68, 70, 72, 73, 74

def v(a, n=1): return f"v{a}" if n == 1 else f"v[{a}:{a+n-1}]"
def s(a, n=1): return f"s{a}" if n == 1 else f"s[{a}:{a+n-1}]"

class G:
    def __init__(self, stamps=False, opt=None):
        self.L = []; self.stamps = stamps; self.ns = 0; self.opt = opt or {}
    def __call__(self, txt):
        for l in txt.strip("\n").split("\n"):
            l = l.strip()
            if l: self.L.append(l if l.endswith(":") else "    " + l)
    def stamp(self, i):
        if self.stamps: self(f"s_memrealtime s[{76+2*i}:{77+2*i}]")
    def text(self): return "\n".join(self.L) + "\n"

def mf32(d, a, b, c): return f"v_mfma_f32_32x32x16_bf16 {v(d,16)}, {v(a,4)}, {v(b,4)}, {c if c == '0' else v(c,16)}"
def mf16(d, a, b, c): return f"v_mfma_f32_16x16x32_bf16 {v(d,4)}, {v(a,4)}, {v(b,4)}, {c if c == '0' else v(c,4)}"

def wfrags(g, base_reg, addr):
    for st in range(8):
        for u in range(2):
            g(f"ds_read_b64_tr_b16 {v(base_reg+4*st+2*u,2)}, {v(addr)} offset:{WR+st*4096+u*1024}")

def gemm_chain(g, d, a, b):
    for st in range(8):
        g(f"s_waitcnt lgkmcnt({min(15, 14-2*st)})")
        g(mf32(d, a+4*st, b+4*st, '0' if st == 0 else d))

def scale_cvt(g, d):
    g("s_nop 7\ns_nop 3")
    for i in range(16): g(f"v_mul_f32 {v(d+i)}, {NLOG2E:#x}, {v(d+i)}")
    for i in range(8): g(f"v_cvt_pk_bf16_f32 {v(d+i)}, {v(d+2*i)}, {v(d+2*i+1)}")

def phase1(g):
    g(f"""
    s_cmp_ge_u32 s2, 256
    s_cbranch_scc1 L_end
    """)
    g.stamp(0)
    g(f"""
    s_load_dwordx16 s[8:23], s[0:1], 0
    s_load_dwordx4 s[24:27], s[0:1], 64
    s_load_dwordx2 s[28:29], s[0:1], 80
    v_lshrrev_b32 v1, 6, v0
    v_mov_b32 v11, v0
    v_mov_b32 v9, 0
    v_readfirstlane_b32 {s(sWV)}, v1
    v_and_b32 v0, 63, v0
    s_and_b32 s5, s2, 7
    s_lshl_b32 s5, s5, 5
    s_lshr_b32 s6, s2, 3
    s_add_u32 {s(sB)}, s5, s6
    s_lshr_b32 s5, {s(sWV)}, 1
    s_and_b32 s5, s5, 1
    s_lshl_b32 s5, s5, 5
    s_lshr_b32 s6, {s(sWV)}, 3
    s_lshl_b32 s6, s6, 2
    s_add_u32 s5, s5, s6
    s_lshr_b32 s6, {s(sWV)}, 1
    s_and_b32 s6, s6, 2
    s_add_u32 s5, s5, s6
    s_and_b32 s6, {s(sWV)}, 1
    s_add_u32 s5, s5, s6
    s_lshl_b32 s5, s5, 8
    s_add_u32 s5, s5, {s(sB)}
    s_lshl_b32 s5, s5, 8
    s_and_b32 s6, {s(sWV)}, 3
    s_lshl_b32 s6, s6, 2
    v_lshrrev_b32 v12, 4, v0
    v_and_b32 v13, 15, v0
    v_add_u32 v14, s6, v12
    v_xor_b32 v14, v14, v13
    v_lshlrev_b32 v14, 4, v14
    v_lshl_add_u32 v14, v12, 19, v14
    v_add_u32 {v(HOFF)}, s5, v14
    s_mul_i32 s7, s2, {CH*4}
    v_lshl_add_u32 v15, v11, 4, s7
    s_cmp_ge_u32 {s(sWV)}, 8
    s_cbranch_scc1 L_p0_gemm
    s_cmp_eq_u32 {s(sWV)}, 7
    s_cbranch_scc1 L_p0_misc
    v_cmp_gt_u32 vcc, {CHT:#x}, v11
    s_mov_b32 s6, {E*4}
    v_cmp_gt_u32 {s(sEX,2)}, s6, v15
    v_lshrrev_b32 v16, 1, v15
    s_waitcnt lgkmcnt(0)
    s_and_b64 {s(sEX,2)}, {s(sEX,2)}, vcc
    s_mov_b64 exec, {s(sEX,2)}
    s_cbranch_execz L_b0
    global_load_dwordx4 v[20:23], v15, {s(pDST,2)}
    global_load_dwordx4 v[24:27], v15, {s(pSRC,2)}
    global_load_dwordx2 v[28:29], v16, {s(pEA,2)}
L_b0:
    s_mov_b64 exec, -1
    """)
    def hdma():
        g(srd(rH, pH, N*256))
        g(f"""
        s_lshl_b32 s5, {s(sWV)}, 10
        s_add_u32 m0, s5, {HR}
        s_nop 0
        buffer_load_dwordx4 {v(HOFF)}, {s(rH,4)}, 0 offen lds
        """)
    hdma()
    g(f"""
    v_lshlrev_b32 v16, 2, v11
    v_mov_b32 v17, 0
    v_mov_b32 v18, 1
    s_cmp_ge_u32 {s(sWV)}, 4
    s_cbranch_scc1 L_b1
    ds_write_b32 v16, v17 offset:{HIST}
L_b1:
    s_mov_b32 s5, 0x0c050100
    s_waitcnt lgkmcnt(0)
    s_barrier
    s_mov_b64 exec, {s(sEX,2)}
    s_waitcnt vmcnt(3)
    """)
    for i in range(4):
        g(f"v_lshlrev_b32_sdwa v{32+i}, 2, v{20+i} dst_sel:DWORD dst_unused:UNUSED_PAD src0_sel:DWORD src1_sel:BYTE_0")
        g(f"ds_add_rtn_u32 v{36+i}, v{32+i}, v18 offset:{HIST}")
    g("s_waitcnt vmcnt(1)")
    for i in range(4):
        g(f"v_perm_b32 v{40+2*i}, v{20+i}, v{24+i}, s5")
        g(f"v_lshlrev_b32 v{41+2*i}, 16, v{28+i//2}" if i % 2 == 0 else f"v_and_b32 v{41+2*i}, 0xffff0000, v{28+i//2}")
    g(f"""
    s_mov_b64 exec, -1
    v_lshlrev_b32 v16, 4, v0
    s_waitcnt vmcnt(0) lgkmcnt(0)
    s_barrier
    """)
    g.stamp(1)
    g(f"""
    ds_read_b128 v[48:51], v16 offset:{HIST}
    s_waitcnt lgkmcnt(0)
    v_add_u32 v52, v48, v49
    v_add3_u32 v52, v52, v50, v51
    v_mov_b32 v53, v52
    s_nop 1
    v_add_u32_dpp v53, v53, v53 row_shr:1 row_mask:0xf bank_mask:0xf bound_ctrl:1
    s_nop 1
    v_add_u32_dpp v53, v53, v53 row_shr:2 row_mask:0xf bank_mask:0xf bound_ctrl:1
    s_nop 1
    v_add_u32_dpp v53, v53, v53 row_shr:4 row_mask:0xf bank_mask:0xf bound_ctrl:1
    s_nop 1
    v_add_u32_dpp v53, v53, v53 row_shr:8 row_mask:0xf bank_mask:0xf bound_ctrl:1
    s_nop 1
    v_add_u32_dpp v53, v53, v53 row_bcast:15 row_mask:0xa bank_mask:0xf
    s_nop 1
    v_add_u32_dpp v53, v53, v53 row_bcast:31 row_mask:0xc bank_mask:0xf
    v_sub_u32 v56, v53, v52
    v_add_u32 v57, v56, v48
    v_add_u32 v58, v57, v49
    v_add_u32 v59, v58, v50
    ds_write_b128 v16, v[56:59] offset:{PREF}
    s_mov_b64 exec, {s(sEX,2)}
    """)
    for i in range(4): g(f"ds_read_b32 v{48+i}, v{32+i} offset:{PREF}")
    for i in range(4):
        g(f"s_waitcnt lgkmcnt({3 if i else 3})" if False else f"s_waitcnt lgkmcnt(3)")
        g(f"v_add_lshl_u32 v{48+i}, v{48+i}, v{36+i}, 3")
        g(f"ds_write_b64 v{48+i}, v[{40+2*i}:{41+2*i}] offset:{SORT}")
    g(f"""
    s_mov_b64 exec, -1
    s_branch L_p1_join
    ; ---------------- wave 7: constants, nonce, w_h image
L_p0_misc:
    s_waitcnt lgkmcnt(0)
    v_mov_b32 v17, 0
    s_cmp_lg_u32 s2, 0
    s_cbranch_scc1 L_m0
    s_memrealtime s[6:7]
    s_waitcnt lgkmcnt(0)
    s_or_b32 s6, s6, 1
    v_mov_b32 v18, s6
    global_store_dword v17, v18, {s(pDBG,2)} sc1
L_m0:
    """)
    hdma()
    g(f"""
    s_lshr_b32 s5, s2, 2
    s_and_b32 s6, s5, 7                 ; ks
    s_and_b32 s7, s2, 3                 ; q
    v_and_b32 v12, 3, v0
    v_lshlrev_b32 v12, 1, v12           ; j
    s_cmp_ge_u32 s6, 4
    s_cbranch_scc1 L_m1
    s_lshl_b32 s7, s7, 3
    v_add_u32 v13, s7, v12
    s_branch L_m2
L_m1:
    s_and_b32 s30, s7, 1
    s_lshl_b32 s30, s30, 4
    s_lshr_b32 s7, s7, 1
    s_lshl_b32 s7, s7, 2
    s_add_u32 s7, s7, s30               ; 16*(q&1)+4*(q>>1)
    v_and_b32 v13, 4, v12
    v_add3_u32 v13, v13, v12, s7        ; + 8*(j>>2) + (j&3)
L_m2:
    s_lshl_b32 s6, s6, 13               ; ks*32*256
    s_lshr_b32 s7, s5, 4
    s_lshl_b32 s7, s7, 6
    s_add_u32 s6, s6, s7
    s_and_b32 s7, s5, 8                 ; a*8 bytes
    s_add_u32 s6, s6, s7
    v_lshrrev_b32 v14, 4, v0            ; m>>2
    v_bfe_u32 v16, v0, 2, 2             ; m&3
    v_lshlrev_b32 v16, 1, v16
    v_lshl_add_u32 v16, v14, 4, v16
    v_lshl_add_u32 v16, v13, 8, v16
    v_add_u32 v16, s6, v16
    v_lshlrev_b32 v19, 2, v0
    global_load_ushort v20, v16, {s(pWH,2)}
    global_load_ushort v21, v16, {s(pWH,2)} offset:256
    global_load_dword v22, v19, {s(pWX,2)}
    v_lshrrev_b32 v12, 3, v0
    v_and_b32 v13, 3, v0
    v_and_b32 v14, 4, v0
    v_lshlrev_b32 v14, 2, v14
    v_mov_b32 v23, 0x3f80
    v_lshlrev_b32 v14, v14, v23
    v_cmp_eq_u32 vcc, v12, v13
    s_nop 1
    v_cndmask_b32 v14, 0, v14, vcc
    ds_write_b32 v19, v14
    s_waitcnt lgkmcnt(0)
    s_barrier
    s_waitcnt vmcnt(0)
    ds_write_b32 v19, v22 offset:{WX}
    v_lshl_or_b32 v20, v21, 16, v20
    s_lshl_b32 s5, s2, 8
    s_add_u32 s5, s5, {WIMG}
    v_add_u32 v19, s5, v19
    global_store_dword v19, v20, {s(pWS,2)} sc1
    s_mov_b32 {s(sCNT)}, 0x100000
L_m3:
    global_load_dword v18, v17, {s(pDBG,2)} sc1
    s_sub_u32 {s(sCNT)}, {s(sCNT)}, 1
    s_waitcnt vmcnt(0)
    v_readfirstlane_b32 s5, v18
    s_cmp_eq_u32 {s(sCNT)}, 0
    s_cbranch_scc1 L_m4
    s_cmp_eq_u32 s5, 0
    s_cbranch_scc1 L_m3
L_m4:
    ds_write_b32 v17, v18 offset:{NONCE}
    s_waitcnt lgkmcnt(0)
    s_barrier
    s_branch L_p1_join
L_p0_gemm:
    s_sub_u32 s5, {s(sWV)}, 8
    s_lshl_b32 s5, s5, 12
    v_lshlrev_b32 v14, 2, v12
    v_xor_b32 v14, v14, v13
    v_lshlrev_b32 v14, 4, v14
    v_lshl_add_u32 v14, v12, 8, v14
    v_add_u32 v9, s5, v14
    v_add_u32 v14, 0x8000, v9
    s_add_u32 m0, s5, {WR}
    s_waitcnt lgkmcnt(0)
    global_load_lds_dwordx4 v14, {s(pWE,2)}
    global_load_lds_dwordx4 v14, {s(pWE,2)} offset:1024
    global_load_lds_dwordx4 v14, {s(pWE,2)} offset:2048
    global_load_lds_dwordx4 v14, {s(pWE,2)} offset:3072
    """)
    hdma()
    g(f"""
    s_and_b32 s5, {s(sWV)}, 1           ; nt
    s_bfe_u32 s6, {s(sWV)}, 0x20001     ; ct
    v_lshrrev_b32 v1, 5, v0             ; h
    v_bfe_u32 v2, v0, 2, 2              ; r'
    v_xor_b32 v3, s6, v2
    v_lshlrev_b32 v3, 6, v3
    v_lshl_add_u32 v3, v2, 8, v3
    v_lshl_add_u32 v3, v1, 11, v3
    v_bfe_u32 v4, v0, 4, 1
    v_lshl_add_u32 v3, v4, 5, v3
    v_and_b32 v4, 3, v0
    v_lshl_add_u32 v8, v4, 3, v3
    v_and_b32 v2, 31, v0                ; r
    s_lshl_b32 s7, s5, 13
    v_lshl_add_u32 v3, v2, 8, s7        ; rho*256
    v_xor_b32 v4, v1, v13
    v_lshl_add_u32 v16, v4, 4, v3
    """)
    for st in range(1, 8): g(f"v_xor_b32 v{16+st}, {st*32:#x}, v16")
    g(f"""
    s_lshl_b32 s7, s6, 2
    v_lshl_add_u32 v4, v1, 1, s7
    v_xor_b32 v4, v4, v13
    v_lshl_add_u32 v7, v4, 4, v3
    v_add_u32 v7, {YR}, v7
    v_xor_b32 v6, 16, v7
    s_lshl_b32 s7, s5, 13
    s_lshl_b32 s30, s6, 9
    s_add_u32 s7, s7, s30
    s_add_u32 s7, s7, {YR}
    v_lshl_add_u32 v5, v2, 4, s7
    v_lshl_add_u32 v5, v1, 11, v5
    s_barrier
    s_waitcnt vmcnt(0)
    s_barrier
    """)
    for st in range(8): g(f"ds_read_b128 {v(64+4*st,4)}, v{16+st} offset:{HR}")
    wfrags(g, 96, 8)
    gemm_chain(g, 40, 96, 64)
    scale_cvt(g, 40)
    g(f"""
    ds_write_b128 v7, v[40:43]
    ds_write_b128 v6, v[44:47]
L_p1_join:
    """)
    g(srd(rWS, pWS, 0x1000000)); g(srd(rBPW, pWS, N*256, off=WBP)); g(srd(rPOS, pPOS, N*6))
    g(f"""
    v_lshlrev_b32 v12, 4, v11
    v_add_u32 v13, {YR}, v12
    s_mul_i32 s5, s2, 12544
    s_add_u32 s5, s5, {WREC}
    v_cmp_gt_u32 vcc, 0x310, v11
    s_waitcnt lgkmcnt(0)
    s_barrier
    """)
    g.stamp(2)
    g(f"""
    ds_read_b128 v[20:23], v12 offset:{SORT}
    ds_read_b128 v[24:27], v13
    s_cmp_lt_u32 {s(sWV)}, 8
    s_cbranch_scc1 L_c0
    s_sub_u32 s6, {s(sWV)}, 8
    s_lshl_b32 s6, s6, 12
    s_add_u32 m0, s6, {WR}
    s_nop 0
    global_load_lds_dwordx4 v9, {s(pWE,2)}
    global_load_lds_dwordx4 v9, {s(pWE,2)} offset:1024
    global_load_lds_dwordx4 v9, {s(pWE,2)} offset:2048
    global_load_lds_dwordx4 v9, {s(pWE,2)} offset:3072
L_c0:
    s_waitcnt lgkmcnt(0)
    buffer_store_dwordx4 v[24:27], {v(HOFF)}, {s(rBPW,4)}, 0 offen sc1
    s_cmp_ge_u32 {s(sWV)}, 13
    s_cbranch_scc1 L_c1
    s_mov_b64 exec, vcc
    buffer_store_dwordx4 v[20:23], v12, {s(rWS,4)}, s5 offen sc1
    s_mov_b64 exec, -1
L_c1:
    """)
    posdma(g, "a")
    g(f"""
    ; T entries (waves 0,1 store them)
    v_lshlrev_b32 v13, 3, v11
    v_mov_b32 v14, 0
    ds_read_b64 v[28:29], v13 offset:{HIST}
    ds_read_b64 v[30:31], v13 offset:{PREF}
    ds_read_b32 v33, v14 offset:{NONCE}
    s_lshl_b32 s5, s2, 11
    s_waitcnt lgkmcnt(0)
    v_lshl_or_b32 v32, v28, 16, v30
    v_lshl_or_b32 v34, v29, 16, v31
    v_mov_b32 v35, v33
    v_readfirstlane_b32 {s(sNON)}, v33
    s_waitcnt vmcnt(5)
    s_barrier
    """)
    g.stamp(3)
    g(f"""
    s_cmp_ge_u32 {s(sWV)}, 2
    s_cbranch_scc1 L_t0
    buffer_store_dwordx4 v[32:35], v12, {s(rWS,4)}, s5 offen sc1
L_t0:
    s_cmp_lt_u32 {s(sWV)}, 8
    s_cbranch_scc1 L_t1
    """)
    wfrags(g, 96, 8)
    for st in range(8):
        g(f"s_waitcnt lgkmcnt({min(15, 14-2*st)})")
        g(mf32(40, 64+4*st, 96+4*st, '0' if st == 0 else 40))
    scale_cvt(g, 40)
    g(f"""
    ds_write_b128 v5, v[40:43]
    ds_write_b128 v5, v[44:47] offset:4096
L_t1:
    """)

def posdma(g, tag):
    g(f"""
    s_mul_i32 s6, {s(sWV)}, 5
    v_lshlrev_b32 v15, 4, {v(LANE)}
    """)
    for k in range(5):
        g(f"""
        s_add_u32 s7, s6, {k}
        s_min_u32 s7, s7, 73
        s_lshl_b32 s7, s7, 10
        s_add_u32 m0, s7, {PR}
        v_add_u32 v14, s7, v15
        buffer_load_dwordx4 v14, {s(rPOS,4)}, 0 offen lds
        """)

def phase2(g):
    g(srd(rBPG, pWS, N, off=WBP, stride=256))
    g(f"""
    s_and_b32 {s(sHALF)}, {s(sWV)}, 1
    s_lshr_b32 {s(sG)}, {s(sWV)}, 1
    s_lshr_b32 {s(sSLOT)}, {s(sWV)}, 2
    s_mul_i32 {s(sSTG)}, {s(sWV)}, {STGS}
    s_add_u32 {s(sSTG)}, {s(sSTG)}, {PR}
    v_and_b32 v12, 31, {v(LANE)}
    s_lshl_b32 s5, {s(sHALF)}, 7
    s_add_u32 s5, s5, 0x10000
    v_lshl_add_u32 v12, v12, 1, s5
    global_load_ushort v56, v12, {s(pWE,2)}
    global_load_ushort v57, v12, {s(pWE,2)} offset:256
    global_load_ushort v58, v12, {s(pWE,2)} offset:64
    global_load_ushort v59, v12, {s(pWE,2)} offset:320
    ; selectors
    v_bfe_u32 v13, {v(LANE)}, 3, 1
    v_and_b32 v14, 3, {v(LANE)}
    v_lshl_add_u32 v13, v13, 2, v14
    v_lshlrev_b32 v13, 4, v13
    v_lshrrev_b32 v14, 1, {v(LANE)}
    v_xor_b32 v14, v14, {v(LANE)}
    v_and_b32 v14, 16, v14
    v_lshl_or_b32 v13, v14, 20, v13
    v_and_b32 v14, 4, {v(LANE)}
    v_lshl_or_b32 v13, v14, 20, v13
    v_xor_b32 v14, 0x400000, v13
    ds_read_b128 {v(SEL0,4)}, v13
    ds_read_b128 {v(SEL1,4)}, v14
    """)
    for i in range(32): g(f"v_mov_b32 {v(A0+i)}, 0")
    g(f"""
    v_lshrrev_b32 v12, 2, v11
    s_lshl_b32 s5, {s(sB)}, 3
    v_lshl_add_u32 v13, v12, 11, s5
    s_mov_b32 {s(sCNT)}, 0x100000
L_poll:
    buffer_load_dwordx2 v[14:15], v13, {s(rWS,4)}, 0 offen sc1
    s_sub_u32 {s(sCNT)}, {s(sCNT)}, 1
    s_waitcnt vmcnt(0)
    v_cmp_ne_u32 vcc, {s(sNON)}, v15
    s_cmp_eq_u32 {s(sCNT)}, 0
    s_cbranch_scc1 L_polled
    s_and_b64 exec, exec, vcc
    s_cbranch_execnz L_poll
L_polled:
    s_mov_b64 exec, -1
    """)
    g.stamp(4)
    g(f"""
    v_lshl_or_b32 {v(Y0)}, v57, 16, v56
    v_lshl_or_b32 {v(Y1)}, v59, 16, v58
    v_mov_b32 {v(Y0+1)}, 0
    v_mov_b32 {v(Y0+2)}, 0
    v_mov_b32 {v(Y0+3)}, 0
    v_mov_b32 {v(Y1+1)}, 0
    v_mov_b32 {v(Y1+2)}, 0
    v_mov_b32 {v(Y1+3)}, 0
    ; STA = byte address of my first record, STB = remaining<<8 | done bits
    v_and_b32 v16, 3, {v(LANE)}
    v_lshlrev_b32 v16, 1, v16
    v_and_b32 v17, 0x7ff, v14
    v_add_lshl_u32 v17, v17, v16, 3
    v_mul_u32_u24 v12, 0x3100, v12
    v_add_u32 {v(STA)}, v12, v17
    v_bfe_u32 v17, v14, 16, 11
    v_sub_u32 v17, v17, v16
    v_lshlrev_b32 {v(STB)}, 8, v17
    s_mov_b32 {s(sK1)}, {WREC}
    s_mov_b32 {s(sK2)}, 0
L_round:
    v_ashrrev_i32 v12, 8, {v(STB)}
    """)
    for u in range(3):
        g(f"""
        v_cmp_lt_i32 vcc, {8*u}, v12
        s_and_b64 exec, exec, vcc
        s_cbranch_execz L_rl
        buffer_load_dwordx4 {v(64+4*u,4)}, {v(STA)}, {s(rWS,4)}, {s(sK1)} offen offset:{64*u} sc1
        """)
    g(f"""
L_rl:
    s_mov_b64 exec, -1
    v_mov_b32 v13, 1
    s_waitcnt lgkmcnt(0)
    s_barrier
    s_waitcnt vmcnt(0)
    """)
    g.stamp(5)
    for r in range(6):
        k = 8*(r//2) + (r % 2)
        g(f"""
        v_and_b32 v14, {1 << r}, {v(STB)}
        v_cmp_lt_i32 vcc, {k}, v12
        v_cmp_eq_u32 {s(sEX,2)}, 0, v14
        v_mov_b32 v{80+r}, -1
        v_bfe_u32 v{86+r}, v{64+2*r}, 16, 3
        s_and_b64 exec, vcc, {s(sEX,2)}
        v_lshlrev_b32 v14, 2, v{86+r}
        ds_add_rtn_u32 v{80+r}, v14, v13 offset:{GC}
        s_mov_b64 exec, -1
        """)
    g(f"s_movk_i32 s5, {CAP}")
    for r in range(6):
        g(f"""
        s_waitcnt lgkmcnt(5)
        v_cmp_gt_u32 vcc, s5, v{80+r}
        v_mad_u32_u24 v14, v{86+r}, s5, v{80+r}
        v_lshlrev_b32 v14, 4, v14
        s_mov_b64 exec, vcc
        ds_write_b64 v14, v[{64+2*r}:{65+2*r}] offset:{RA}
        v_or_b32 {v(STB)}, {1 << r}, {v(STB)}
        s_mov_b64 exec, -1
        v_add_u32 v{80+r}, 1, v{80+r}
        """)
    g(f"""
    ; failed = some slot >= CAP (slot+1 > CAP) ; else advance window
    v_max3_u32 v14, v80, v81, v82
    v_max3_u32 v14, v14, v83, v84
    v_max_u32 v14, v14, v85
    v_cmp_ge_u32 vcc, s5, v14
    v_add_u32 v15, 192, {v(STA)}
    v_add_u32 v16, -24, v12
    v_lshlrev_b32 v16, 8, v16
    v_cndmask_b32 {v(STA)}, {v(STA)}, v15, vcc
    v_mov_b32 v17, 0
    v_cndmask_b32 {v(STB)}, {v(STB)}, v16, vcc
    v_cmp_lt_i32 vcc, 0xff, {v(STB)}
    s_mov_b64 exec, vcc
    ds_write_b32 v17, v13 offset:{MORE}
    s_mov_b64 exec, -1
    s_lshl_b32 s5, {s(sG)}, 2
    v_mov_b32 v14, s5
    s_waitcnt lgkmcnt(0)
    s_barrier
    """.replace("v_add_u32 v15, 192,", "v_add_u32 v15, 0xc0,").replace("v_add_u32 v16, -24,", "v_add_u32 v16, 0xffffffe8,"))
    g.stamp(6)
    g(f"""
    ds_read_b32 v15, v14 offset:{GC}
    ds_read_b32 v16, v17 offset:{MORE}
    s_lshl_b32 s5, {s(sHALF)}, 6
    v_add_u32 v12, s5, {v(LANE)}
    s_mul_i32 s6, {s(sG)}, {CAP}
    v_add_u32 v13, s6, v12
    v_lshlrev_b32 v18, 2, v13
    v_lshlrev_b32 v13, 4, v13
    v_add_u32 v13, {RA}, v13
    ds_read_b64 v[64:65], v13
    s_cmp_lg_u32 {s(sK2)}, 0
    s_cbranch_scc1 L_noy
    s_lshl_b32 s5, {s(sG)}, 11
    s_lshl_b32 s7, {s(sHALF)}, 10
    s_add_u32 s5, s5, s7
    s_add_u32 s5, s5, {YR - 512}
    v_lshl_add_u32 v19, {v(LANE)}, 4, s5
    s_mov_b32 exec_lo, 0
    ds_read_b128 {v(Y0,4)}, v19
    ds_read_b128 {v(Y1,4)}, v19 offset:512
    s_mov_b32 exec_lo, -1
L_noy:
    s_mul_i32 s30, {s(sB)}, 6
    s_add_u32 s30, s30, {PR}
    s_mov_b32 s31, {PR}
    s_waitcnt lgkmcnt(0)
    v_readfirstlane_b32 {s(sN)}, v15
    v_readfirstlane_b32 {s(sMORE)}, v16
    s_min_u32 {s(sN)}, {s(sN)}, {CAP}
    s_add_u32 {s(sNT)}, {s(sN)}, 31
    s_lshr_b32 {s(sNT)}, {s(sNT)}, 5
    s_lshl_b32 s7, {s(sNT)}, 5
L_geo:
    v_cmp_gt_u32 {s(sEX,2)}, s7, v12
    v_cmp_gt_u32 vcc, {s(sN)}, v12
    v_mov_b32 v68, 0
    v_mov_b32 v69, 0x3fff
    v_mov_b32 v70, 0
    v_mov_b32 v71, 0
    v_mov_b32 v72, v13
    s_cmp_eq_u64 {s(sEX,2)}, 0
    s_cbranch_scc1 L_geod
    s_mov_b64 exec, vcc
    v_and_b32 v73, 0xffff, v64
    v_mad_u32_u24 v73, v73, 6, s31
    v_lshrrev_b32 v74, 16, v64
    v_mul_u32_u24 v75, 0x600, v74
    v_add_u32 v75, s30, v75
    ds_read_u16_d16_hi v76, v73
    ds_read_u16_d16_hi v79, v75
    ds_read_u16_d16_hi v77, v73 offset:2
    ds_read_u16_d16_hi v80, v75 offset:2
    ds_read_u16_d16_hi v78, v73 offset:4
    ds_read_u16_d16_hi v81, v75 offset:4
    v_mov_b32 v69, v64
    v_mul_f32 v66, {NLOG2E:#x}, v65
    v_lshrrev_b32 v74, 3, v74
    v_lshl_or_b32 v72, v74, 20, v13
    s_waitcnt lgkmcnt(4)
    v_sub_f32 v76, v79, v76
    s_waitcnt lgkmcnt(2)
    v_sub_f32 v77, v80, v77
    v_mul_f32 v67, v76, v76
    s_waitcnt lgkmcnt(0)
    v_sub_f32 v78, v81, v78
    v_fmac_f32 v67, v77, v77
    v_cvt_pk_bf16_f32 v70, 1.0, v76
    v_fmac_f32 v67, v78, v78
    v_cvt_pk_bf16_f32 v71, v77, v78
    v_mul_f32 v67, {NLOG2E:#x}, v67
    v_cvt_pk_bf16_f32 v68, v67, v66
    s_mov_b64 exec, -1
    ds_read_b64 v[64:65], v13 offset:2048
    s_mov_b64 exec, {s(sEX,2)}
    ds_write_b128 v13, v[68:71]
    ds_write_b32 v18, v72 offset:{WA}
    s_mov_b64 exec, -1
    v_add_u32 v12, 0x80, v12
    v_add_u32 v13, 0x800, v13
    v_add_u32 v18, 0x200, v18
    s_waitcnt lgkmcnt(0)
    s_branch L_geo
L_geod:
    ; loop address registers
    s_mul_i32 s5, {s(sG)}, {CAP*4}
    s_add_u32 s5, s5, {WA}
    s_mul_i32 s6, {s(sG)}, {CAP*16}
    s_add_u32 s6, s6, {RA+4}
    v_lshrrev_b32 v64, 5, {v(LANE)}        ; h
    v_and_b32 v65, 31, {v(LANE)}           ; r
    v_lshl_add_u32 {v(AWX)}, v65, 2, s5
    v_lshl_add_u32 {v(AWX)}, v64, 1, {v(AWX)}
    v_bfe_u32 v66, {v(LANE)}, 2, 2
    v_lshl_add_u32 v66, v64, 2, v66
    v_lshl_add_u32 {v(AWS)}, v66, 2, s5
    v_lshrrev_b32 v66, 3, {v(LANE)}
    v_lshl_add_u32 {v(AIDX)}, v66, 4, s6
    v_lshrrev_b32 v66, 1, v66
    v_and_b32 v67, 7, {v(LANE)}
    v_xor_b32 v66, v66, v67
    s_lshl_b32 s5, {s(sHALF)}, 7
    v_lshl_add_u32 {v(DP+1)}, v66, 4, s5
    v_mov_b32 {v(DP+3)}, {v(DP+1)}
    v_mov_b32 {v(DP+5)}, {v(DP+1)}
    v_mov_b32 {v(DP+7)}, {v(DP+1)}
    v_bfe_u32 v66, {v(LANE)}, 4, 1
    v_and_b32 v68, 3, {v(LANE)}
    v_lshl_add_u32 v66, v66, 2, v68
    v_lshlrev_b32 {v(MYN)}, 20, v66
    v_lshrrev_b32 v66, 3, v65
    v_mul_u32_u24 v66, {USTR:#x}, v66
    v_lshl_add_u32 v66, v67, 7, v66
    v_lshrrev_b32 v67, 1, v67
    v_xor_b32 v67, v67, v64
    v_lshlrev_b32 v67, 4, v67
    v_add3_u32 {v(FA0)}, v66, v67, {s(sSTG)}
    v_xor_b32 v67, 32, v67
    v_add3_u32 {v(FA1)}, v66, v67, {s(sSTG)}
    s_waitcnt lgkmcnt(0)
    s_barrier
    """)
    g.stamp(7)

def idxreads(g, toff):
    for u in range(4): g(f"ds_read_u16 {v(DP+2*u)}, {v(AIDX)} offset:{toff*512+u*128}")
def dma(g):
    for u in range(4):
        g(f"s_add_u32 m0, {s(sSTG)}, {u*USTR}" if u else f"s_mov_b32 m0, {s(sSTG)}")
        g("s_nop 0")
        g(f"buffer_load_dwordx4 {v(DP+2*u,2)}, {s(rBPG,4)}, 0 idxen offen sc1 lds")
def wread(g, S, toff, b): g(f"ds_read2_b32 {v(S+2,2)}, {v(AWS)} offset0:{toff*32+16*b} offset1:{toff*32+16*b+8}")
def sread(g, S):
    g(f"""
    v_xor_b32 {v(S+2)}, {v(S+2)}, {v(MYN)}
    v_xor_b32 {v(S+3)}, {v(S+3)}, {v(MYN)}
    ds_read_b64_tr_b16 {v(S,2)}, {v(S+2)} offset:8
    ds_read_b64_tr_b16 {v(S+2,2)}, {v(S+3)} offset:8
    """)

def half(g, Dc, o, ins):
    def at(k):
        if k in ins:
            x = ins[k]
            if callable(x): x()
            else: g(x)
    for i in range(8):
        at(f"E{i}"); g(f"v_exp_f32 {v(T+i)}, {v(Dc+o+i)}")
    at("A")
    for i in range(4): g(f"v_pk_add_f32 {v(T+2*i,2)}, {v(T+2*i,2)}, 1.0 op_sel_hi:[1,0]")
    for i in range(8):
        at(f"R{i}"); g(f"v_rcp_f32 {v(T+i)}, {v(T+i)}")
    at("M")
    for i in range(4): g(f"v_pk_mul_f32 {v(T+2*i,2)}, {v(T+2*i,2)}, {v(Dc+o+2*i,2)}")
    at("C")
    for i in range(4): g(f"v_cvt_pk_bf16_f32 {v(Dc+o+i)}, {v(T+2*i)}, {v(T+2*i+1)}")
    at("Z")

def tile(g, last):
    W = "s_waitcnt lgkmcnt(0)\n"
    def e3(): wread(g, SB, 0, 1)
    def a0(): g(W); sread(g, SB)
    ins = {"E2": mf32(A1, D1+8, SB, A1), "E3": e3, "A": a0, "R0": mf32(D1, X, Y1, '0')}
    if not last:
        ins["R1"] = f"ds_read_u16 {v(XA)}, {v(AWX)} offset:128"
        ins["M"] = W + f"ds_read_b128 {v(X,4)}, {v(XA)}"
    half(g, D0, 0, ins)
    ins = {"E0": mf32(D1, F0, SEL0, D1), "E3": mf32(A0, D0, SA, A0), "R0": mf32(D1, F1, SEL1, D1)}
    if not last: ins["R1"] = lambda: idxreads(g, 2)
    half(g, D0, 8, ins)
    ins = {"E2": W + mf32(A0, D0+8, SB, A0)}
    if not last:
        ins["A"] = f"s_waitcnt vmcnt(0)\nds_read_b128 {v(F0,4)}, {v(FA0)}\nds_read_b128 {v(F1,4)}, {v(FA1)}"
        ins["R0"] = mf32(D0, X, Y0, '0')
    half(g, D1, 0, ins)
    ins = {"E3": mf32(A1, D1, SA, A1)}
    if not last:
        ins["E0"] = W + mf32(D0, F0, SEL0, D0)
        ins["E1"] = f"ds_read_b128 {v(F0,4)}, {v(FA0)} offset:64"
        ins["E4"] = lambda: wread(g, SA, 1, 0)
        def a1(): g(W); sread(g, SA)
        ins["A"] = a1
        ins["R0"] = mf32(D0, F1, SEL1, D0)
        ins["R1"] = f"ds_read_b128 {v(F1,4)}, {v(FA1)} offset:64"
        def m1():
            g(W + f"s_cmp_lt_u32 {s(sNT)}, 3\ns_cbranch_scc1 L_nodma")
            dma(g); g("L_nodma:")
        ins["M"] = m1
        ins["C"] = f"v_add_u32 {v(AWX)}, 0x80, {v(AWX)}\nv_add_u32 {v(AWS)}, 0x80, {v(AWS)}\nv_add_u32 {v(AIDX)}, 0x200, {v(AIDX)}"
    half(g, D1, 8, ins)

def mainloop(g):
    g(f"""
    s_cmp_eq_u32 {s(sNT)}, 0
    s_cbranch_scc1 L_done
    """)
    idxreads(g, 0)
    g(f"ds_read_u16 {v(XA)}, {v(AWX)}")
    wread(g, SA, 0, 0)
    g("s_waitcnt lgkmcnt(0)")
    dma(g)
    idxreads(g, 1)
    g(f"ds_read_b128 {v(X,4)}, {v(XA)}")
    sread(g, SA)
    for i in range(4): g(f"v_mov_b32 {v(SB+i)}, 0\nv_mov_b32 {v(D1+8+i)}, 0")
    g(f"""
    s_waitcnt vmcnt(0)
    ds_read_b128 {v(F0,4)}, {v(FA0)}
    ds_read_b128 {v(F1,4)}, {v(FA1)}
    s_waitcnt lgkmcnt(0)
    {mf32(D0, X, Y0, '0')}
    {mf32(D0, F0, SEL0, D0)}
    {mf32(D0, F1, SEL1, D0)}
    ds_read_b128 {v(F0,4)}, {v(FA0)} offset:64
    ds_read_b128 {v(F1,4)}, {v(FA1)} offset:64
    s_waitcnt lgkmcnt(0)
    s_nop 7
    s_cmp_lt_u32 {s(sNT)}, 2
    s_cbranch_scc1 L_last
    """)
    dma(g)
    g("L_tile:")
    tile(g, False)
    g(f"""
    s_sub_u32 {s(sNT)}, {s(sNT)}, 1
    s_cmp_ge_u32 {s(sNT)}, 2
    s_cbranch_scc1 L_tile
L_last:
    """)
    tile(g, True)
    g(f"""
    s_nop 1
    {mf32(A1, D1+8, SB, A1)}
L_done:
    s_cmp_eq_u32 {s(sMORE)}, 0
    s_cbranch_scc1 L_fin
    ; another round: every wave is done with R / staging, reset counters, reload pos
    s_barrier
    s_mov_b32 {s(sK2)}, 1
    v_lshlrev_b32 v12, 2, {v(LANE)}
    v_mov_b32 v13, 0
    s_mov_b64 exec, 0x1ff
    ds_write_b32 v12, v13 offset:{GC}
    s_mov_b64 exec, -1
    """)
    posdma(g, "b")
    g("s_branch L_round\nL_fin:")
    g.stamp(8)

def epilogue(g):
    g(srd(rOUT, pOUT, N*256)); g(srd(rOUTP, pOUT, N*6, off=N*256))
    g(f"""
    v_lshrrev_b32 v64, 5, {v(LANE)}
    v_bfe_u32 v65, {v(LANE)}, 2, 3         ; node
    s_and_b32 s5, {s(sWV)}, 2
    s_lshl_b32 s5, s5, 2                   ; side*8
    v_add_u32 v66, s5, v65
    s_lshl_b32 s6, {s(sHALF)}, 3
    v_lshl_add_u32 v67, v64, 1, s6
    v_xor_b32 v67, v67, v66
    v_lshlrev_b32 v67, 4, v67
    v_lshl_add_u32 v67, v66, 8, v67
    s_lshl_b32 s6, {s(sSLOT)}, 12
    s_add_u32 s6, s6, {YR}
    v_add_u32 v67, s6, v67
    v_xor_b32 v68, 16, v67
    v_xor_b32 v69, 64, v67
    v_xor_b32 v70, 0x50, v67
    s_lshl_b32 s6, {s(sHALF)}, 7
    v_lshl_add_u32 v71, v64, 3, s6
    ds_read2_b64 v[40:43], v71 offset0:{WX//8} offset1:{WX//8+2}
    ds_read2_b64 v[44:47], v71 offset0:{WX//8+4} offset1:{WX//8+6}
    ds_read2_b64 v[48:51], v71 offset0:{WX//8+8} offset1:{WX//8+10}
    ds_read2_b64 v[52:55], v71 offset0:{WX//8+12} offset1:{WX//8+14}
    """)
    for i in range(16): g(f"v_cvt_pk_bf16_f32 {v(A0+i)}, {v(A0+2*i)}, {v(A0+2*i+1)}")
    g(f"""
    s_mov_b32 s6, 0x11111111
    s_mov_b32 exec_lo, s6
    s_mov_b32 exec_hi, s6
    ds_write_b128 v67, {v(A0,4)}
    ds_write_b128 v68, {v(A0+4,4)}
    ds_write_b128 v69, {v(A0+8,4)}
    ds_write_b128 v70, {v(A0+12,4)}
    s_mov_b64 exec, 1
    s_lshl_b32 s6, {s(sSLOT)}, 2
    v_mov_b32 v72, s6
    v_mov_b32 v73, 1
    s_waitcnt lgkmcnt(0)
    ds_add_u32 v72, v73 offset:{SLOTC}
    s_mov_b64 exec, -1
    {mf32(80, 40, A0, '0')}
    {mf32(80, 44, A0+4, 80)}
    {mf32(80, 48, A0+8, 80)}
    {mf32(80, 52, A0+12, 80)}
    v_and_b32 v74, 3, {v(LANE)}            ; d
    v_lshl_add_u32 v75, v65, 3, {s(sG)}    ; dloc
    v_lshl_add_u32 v75, v75, 8, {s(sB)}    ; node
    v_mul_u32_u24 v75, 6, v75
    v_lshl_add_u32 v75, v74, 1, v75
    v_add_u32 v75, -2, v75
    s_mov_b32 s6, 0xeeeeeeee
    s_mov_b32 exec_lo, s6
    s_mov_b32 exec_hi, 0
    buffer_load_ushort v76, v75, {s(rPOS,4)}, 0 offen
    s_mov_b64 exec, -1
    s_lshl_b32 s6, {s(sWV)}, 7
    v_lshl_add_u32 v77, {v(LANE)}, 2, s6
    v_xor_b32 v78, 0x80, v77
    s_lshl_b32 s6, {s(sG)}, 2
    v_mov_b32 v72, s6
    v_mov_b32 v73, 1
    s_nop 7
    s_mov_b32 exec_hi, 0
    ds_write_b32 v77, v80 offset:{PP}
    s_mov_b64 exec, 1
    s_waitcnt lgkmcnt(0)
    ds_add_rtn_u32 v79, v72, v73 offset:{PAIRC}
    s_waitcnt lgkmcnt(0)
    v_readfirstlane_b32 s6, v79
    s_mov_b64 exec, -1
    s_cmp_eq_u32 s6, 0
    s_cbranch_scc1 L_nopos
    ds_read_b32 v81, v78 offset:{PP}
    s_mov_b32 s6, 0xeeeeeeee
    s_mov_b32 exec_lo, s6
    s_mov_b32 exec_hi, 0
    s_waitcnt vmcnt(0) lgkmcnt(0)
    v_add_f32 v80, v80, v81
    v_lshlrev_b32 v76, 16, v76
    v_fmac_f32 v76, {NLN2:#x}, v80
    v_cvt_pk_bf16_f32 v76, v76, v76
    buffer_store_short v76, v75, {s(rOUTP,4)}, 0 offen
    s_mov_b64 exec, -1
L_nopos:
    s_cmp_lg_u32 {s(sSLOT)}, 0
    s_cbranch_scc1 L_exit
    s_lshl_b32 s5, {s(sWV)}, 14
    s_add_u32 s5, s5, {WIMG}
    v_lshlrev_b32 v12, 4, {v(LANE)}
    """)
    for f in range(16):
        if f and f % 4 == 0: g("s_add_u32 s5, s5, 4096")
        g(f"buffer_load_dwordx4 {v(64+4*f,4)}, v12, {s(rWS,4)}, s5 offen offset:{(f%4)*1024} sc1")
    g(f"""
    v_lshrrev_b32 v13, 4, {v(LANE)}        ; q
    v_and_b32 v14, 15, {v(LANE)}
    v_lshrrev_b32 v15, 3, v14              ; side
    v_and_b32 v16, 7, v14                  ; j
    v_xor_b32 v17, v13, v14
    v_lshlrev_b32 v17, 4, v17
    v_lshl_add_u32 v17, v14, 8, v17
    v_add_u32 v4, {YR}, v17
    v_xor_b32 v5, 64, v4
    v_xor_b32 v6, 0x80, v4
    v_xor_b32 v7, 0xc0, v4
    v_and_b32 v17, 4, v16
    v_add_u32 v17, v17, v16
    v_lshl_add_u32 v17, v15, 2, v17
    v_xor_b32 v18, v13, v17
    v_lshlrev_b32 v18, 4, v18
    v_lshl_add_u32 v8, v17, 8, v18
    v_add_u32 v8, {HR}, v8
    v_xor_b32 v9, 64, v8
    v_xor_b32 v10, 0x80, v8
    v_xor_b32 v11, 0xc0, v8
    s_lshl_b32 s5, {s(sWV)}, 6
    v_xor_b32 v3, s5, v8
    v_lshl_add_u32 v17, v16, 3, v15
    v_lshlrev_b32 v17, 16, v17
    v_lshl_add_u32 v17, v13, 4, v17
    s_lshl_b32 s6, {s(sB)}, 8
    s_add_u32 s6, s6, s5
    v_add_u32 v2, s6, v17
    v_mov_b32 v1, 0
    s_waitcnt vmcnt(0)
    """)
    for sl in range(4):
        o = sl*4096
        g(f"""
        ds_read_b128 v[12:15], v8 offset:{o}
        ds_read_b128 v[16:19], v9 offset:{o}
        ds_read_b128 v[20:23], v10 offset:{o}
        ds_read_b128 v[24:27], v11 offset:{o}
        ds_read_b128 v[28:31], v3 offset:{o}
        s_waitcnt lgkmcnt(0)
        """)
        for ks in range(4):
            for a in range(2): g(mf16(32+4*a, 64+32*a+4*ks, 12+4*ks, '0' if ks == 0 else 32+4*a))
        for i in range(4):
            g(f"v_lshlrev_b32 v{40+2*i}, 16, v{28+i}\nv_and_b32 v{41+2*i}, 0xffff0000, v{28+i}")
        for i in range(8): g(f"v_mul_f32 v{32+i}, {NLOG2E:#x}, v{32+i}")
        g(f"""
        s_mov_b32 {s(sCNT)}, 0x1000000
L_sw{sl}:
        ds_read_b32 v48, v1 offset:{SLOTC+4*sl}
        s_sub_u32 {s(sCNT)}, {s(sCNT)}, 1
        s_waitcnt lgkmcnt(0)
        v_readfirstlane_b32 s5, v48
        s_cmp_eq_u32 {s(sCNT)}, 0
        s_cbranch_scc1 L_sg{sl}
        s_cmp_ge_u32 s5, 4
        s_cbranch_scc1 L_sg{sl}
        s_sleep 1
        s_branch L_sw{sl}
L_sg{sl}:
        ds_read_b128 v[12:15], v4 offset:{o}
        ds_read_b128 v[16:19], v5 offset:{o}
        ds_read_b128 v[20:23], v6 offset:{o}
        ds_read_b128 v[24:27], v7 offset:{o}
        """)
        for ks in range(4):
            g(f"s_waitcnt lgkmcnt({3-ks})")
            for a in range(2): g(mf16(32+4*a, 64+32*a+16+4*ks, 12+4*ks, 32+4*a))
        g("s_nop 6")
        for i in range(8): g(f"v_exp_f32 v{48+i}, v{32+i}")
        for i in range(8): g(f"v_add_f32 v{48+i}, 1.0, v{48+i}\nv_mul_f32 v{32+i}, {NLN2:#x}, v{32+i}")
        for i in range(8): g(f"v_rcp_f32 v{48+i}, v{48+i}")
        for i in range(8): g(f"v_fmac_f32 v{40+i}, v{32+i}, v{48+i}")
        for i in range(4): g(f"v_cvt_pk_bf16_f32 v{56+i}, v{40+2*i}, v{41+2*i}")
        g(f"buffer_store_dwordx4 v[56:59], v2, {s(rOUT,4)}, 0 offen\nv_add_u32 v2, 0x20000, v2")
    g("L_exit:")
    if g.stamps:
        g.stamp(9)
        g(f"""
        s_waitcnt vmcnt(0)
        s_memrealtime s[96:97]
        s_lshl_b32 s5, s2, 4
        s_add_u32 s5, s5, {s(sWV)}
        s_lshl_b32 s5, s5, 6
        s_add_u32 s5, s5, {WST}
        v_mov_b32 v1, s5
        s_waitcnt lgkmcnt(0)
        s_mov_b64 exec, 1
        """)
        for i in range(11): g(f"v_mov_b32 v2, s{76+2*i}\nglobal_store_dword v1, v2, {s(pWS,2)} offset:{4*i}")
    g("L_end:\ns_endpgm")

def build(stamps=False, opt=None):
    g = G(stamps, opt)
    if stamps:
        pass
    phase1(g); phase2(g); mainloop(g); epilogue(g)
    body = g.text()
    txt = HEAD + f"; @launch grid=(256,1,1) block=(1024,1,1) lds={LDS}\n"
    txt += f'''.amdgcn_target "amdgcn-amd-amdhsa--gfx950"
.text
.globl {NAME}_kernel
.p2align 8
.type {NAME}_kernel,@function
{NAME}_kernel:
{body}.section .rodata,"a"
.p2align 6
.amdhsa_kernel {NAME}_kernel
  .amdhsa_next_free_vgpr 128
  .amdhsa_next_free_sgpr 102
  .amdhsa_accum_offset 128
  .amdhsa_group_segment_fixed_size 0
  .amdhsa_kernarg_size 88
  .amdhsa_user_sgpr_count 2
  .amdhsa_user_sgpr_kernarg_segment_ptr 1
  .amdhsa_system_sgpr_workgroup_id_x 1
  .amdhsa_float_denorm_mode_32 3
.end_amdhsa_kernel
'''
    for b in hazard.check(body): print("HAZARD need %d have %d:\n   %s\n   %s" % (b[2], b[3], b[0], b[1]))
    return txt

if __name__ == "__main__":
    open(sys.argv[1], "w").write(build(stamps=len(sys.argv) > 2 and sys.argv[2] == "st"))
```

```python
import sys
from common import HEAD, NAME, srd
import hazard, align

N = 12500; E = 400000
CH = 1564; CHT = CH // 4
CAP = 352
OHT = 0; GC2 = 0x80; NGC = 0x90; ESC = 0x94; G1 = 0x98; DRC = 0x9c
GC = 0xA0; MORE = 0xC0; S1 = 0xC4; S2 = S1; SL = 0xCC; SLOTC = 0xD0; PAIRC = 0xE0; WX = 0x100
RA = 0x200
WR = RA; SORT = WR + 32768
QR = SORT + 12544
HIST = QR; PREF = QR + 2048; LIST = QR; PP = QR
BASE = QR + 4096; DT = BASE + 4096; WL = DT + 512
HR = WL + 512; YR = HR + 16384; PR = YR + 16384; LDS = 163840
STGS = 4352; USTR = 1088
assert RA + 8*CAP*16 <= QR and HR % 256 == 0 and PR + 75008 <= LDS and PR + 16 * STGS <= LDS
WEP = 0; WT = 0x100000; WREC = 0x200000; WBP = 0x600000; WIMG = 0xA00000; WF = 0xA20000; WST = 0x6000000
NLOG2E = 0xbfb8aa3b; NLN2 = 0xbf317218
TAGMASK = 0xffc0fff0
LANE, STA, STB, XA, FA0, FA1, AWX, AIDX, AWS, MYN, EA0, EA1 = range(12)
DP = 12; X = 20; Y0 = 24; Y1 = 28; SEL0 = 32; SEL1 = 36; SA = 40; SB = 44; F0 = 48; F1 = 52; T = 56
D0 = 64; D1 = 80; A0 = 96; A1 = 112
TID = STA; T2 = STB
sB, sWV = 3, 4
pH, pPOS, pEA, pSRC, pDST, pWE, pWX, pWH, pOUT, pDBG, pWS = 8, 10, 12, 14, 16, 18, 20, 22, 24, 26, 28
rH, rPOS, rWS, rBPW, rBPG, rOUT, rOUTP = 32, 36, 40, 44, 48, 52, 56
sNON, sG, sHALF, sSLOT, sN, sNT, sSTG, sMORE, sEX, sEX2, sCNT, sK1, sK2, sTAG = 60, 61, 62, 63, 64, 65, 66, 67, 68, 70, 72, 73, 74, 75

def v(a, n=1): return f"v{a}" if n == 1 else f"v[{a}:{a+n-1}]"
def s(a, n=1): return f"s{a}" if n == 1 else f"s[{a}:{a+n-1}]"

class G:
    def __init__(self, stamps=False, opt=None):
        self.L = []; self.stamps = stamps; self.opt = opt or {}
    def __call__(self, txt):
        for l in txt.strip("\n").split("\n"):
            l = l.strip()
            if l: self.L.append(l if l.endswith(":") else "    " + l)
    def es(self, i):
        return f"s_memrealtime s[{76+2*i}:{77+2*i}]" if self.stamps and self.opt.get("early") else ""
    def stamp(self, i):
        if self.stamps and self.opt.get("early") and i >= 5: return
        if self.stamps and self.opt.get("loopst") and 1 <= i <= 6: return
        if self.stamps:
            c = self.opt.get("cyc")
            if c:
                if i in (1, 2): return
                if i in c: self(f"s_memtime s[{78+2*c.index(i)}:{79+2*c.index(i)}]")
            self(f"s_memrealtime s[{76+2*i}:{77+2*i}]")
    def text(self): return "\n".join(self.L) + "\n"

def mf32(d, a, b, c): return f"v_mfma_f32_32x32x16_bf16 {v(d,16)}, {v(a,4)}, {v(b,4)}, {c if c == '0' else v(c,16)}"
def mf16(d, a, b, c): return f"v_mfma_f32_16x16x32_bf16 {v(d,4)}, {v(a,4)}, {v(b,4)}, {c if c == '0' else v(c,4)}"

def scale_cvt(g, d):
    g("s_nop 7\ns_nop 3")
    for i in range(16): g(f"v_mul_f32 {v(d+i)}, {NLOG2E:#x}, {v(d+i)}")
    for i in range(8): g(f"v_cvt_pk_bf16_f32 {v(d+i)}, {v(d+2*i)}, {v(d+2*i+1)}")

def scan64(g, regs):
    steps = [f"row_shr:{k} row_mask:0xf bank_mask:0xf bound_ctrl:1" for k in (1, 2, 4, 8)]
    steps += ["row_bcast:15 row_mask:0xa bank_mask:0xf", "row_bcast:31 row_mask:0xc bank_mask:0xf"]
    for st in steps:
        if len(regs) < 3: g(f"s_nop {2-len(regs)}")
        for r in regs: g(f"v_add_u32_dpp v{r}, v{r}, v{r} {st}")

def posrun(g, first, n, areg):
    g(first)
    g(f"s_lshl_b32 s7, s7, 10\nv_lshl_add_u32 v{areg}, {v(LANE)}, 4, s7\ns_add_u32 s7, s7, {PR}")
    for k in range(n):
        if k % 4 == 0:
            g("s_mov_b32 m0, s7" if k == 0 else f"s_add_u32 m0, s7, {k*1024}")
            g("s_nop 0" if k == 0 else f"v_add_u32 v{areg}, 0x1000, v{areg}")
        g(f"buffer_load_dwordx4 v{areg}, {s(rPOS,4)}, 0 offen offset:{(k%4)*1024} lds")

SPINB = 0x400000
def arrive(g, addr, z, one):
    g(f"s_mov_b64 exec, 1\nds_add_u32 v{z}, v{one} offset:{addr}\ns_mov_b64 exec, -1")
def spin(g, addr, n, z, d, lab):
    sl = g.opt.get("spinsleep", 1)
    g(f"""
    s_mov_b32 {s(sCNT)}, {SPINB}
    s_branch {lab}e
{lab}:
    {f"s_sleep {sl}" if sl else ""}
    s_sub_u32 {s(sCNT)}, {s(sCNT)}, 1
    s_cbranch_scc1 {lab}d
{lab}e:
    ds_read_b32 v{d}, v{z} offset:{addr}
    s_waitcnt lgkmcnt(0)
    v_readfirstlane_b32 s30, v{d}
    s_cmp_lt_u32 s30, {n}
    s_cbranch_scc1 {lab}
{lab}d:
    """)
WSOFF = 0
EPLOAD = f"WSADD\ns_load_dword {s(sNON)}, {s(pWS,2)}, {WEP}"
EPFIX = f"""s_add_u32 {s(sNON)}, {s(sNON)}, {(341 << 22) + 0x10:#x}
    s_and_b32 {s(sTAG)}, {s(sNON)}, {TAGMASK:#x}"""
ZR, ONE = 44, 43

def phase1(g):
    es = g.es
    CODEPF = "" if g.opt.get("nocodepf") else f"""s_getpc_b64 s[30:31]
L_pc:
    s_and_b32 s6, s6, 1
    s_lshl_b32 s6, s6, 13
    s_sub_u32 s30, s30, L_pc-{NAME}_kernel
    s_subb_u32 s31, s31, 0
    v_lshl_add_u32 v73, v0, 7, s6
    v_min_u32 v73, L_codeend-{NAME}_kernel-4, v73
    global_load_dword v73, v73, s[30:31]"""
    g(f"""
    s_cmp_ge_u32 s2, 256
    s_cbranch_scc1 L_end
    """)
    g.stamp(0)
    g(f"""
    s_load_dwordx16 s[8:23], s[0:1], 0
    s_load_dwordx4 s[24:27], s[0:1], 64
    s_load_dwordx2 s[28:29], s[0:1], 80
    v_lshrrev_b32 v2, 6, v0
    v_mov_b32 {v(TID)}, v0
    v_readfirstlane_b32 {s(sWV)}, v2
    v_and_b32 v0, 63, v0
    s_and_b32 s5, s2, 7
    s_lshl_b32 s5, s5, 5
    s_lshr_b32 s6, s2, 3
    s_add_u32 {s(sB)}, s5, s6
    v_mov_b64 v[44:45], 0
    v_mov_b32 v{ONE}, 1
    v_mov_b64 v[18:19], 0
    v_mov_b64 v[46:47], 0
    s_cmp_ge_u32 {s(sWV)}, 8
    s_cbranch_scc1 L_e_gemm
    s_cmp_lg_u32 {s(sWV)}, 7
    s_cbranch_scc1 L_e_bin
    {CODEPF}
    v_lshlrev_b32 v19, 2, v0
    v_lshrrev_b32 v12, 3, v0
    v_and_b32 v13, 3, v0
    v_and_b32 v14, 4, v0
    v_lshlrev_b32 v14, 2, v14
    v_mov_b32 v23, 0x3f80
    v_lshlrev_b32 v14, v14, v23
    v_cmp_eq_u32 vcc, v12, v13
    s_mov_b32 s5, {2*CAP*0x10001}
    v_mul_lo_u32 v15, v0, s5
    v_cndmask_b32 v14, 0, v14, vcc
    v_add_u32 v15, {(RA//16) | ((RA//16+CAP) << 16)}, v15
    ds_write_b32 v19, v14
    s_mov_b64 exec, 0xf
    ds_write_b32 v19, v15 offset:{GC2}
    s_mov_b64 exec, -1
    s_lshr_b32 s5, s2, 3
    s_lshl_b32 s5, s5, 11
    v_and_b32 v15, 15, v0
    v_lshl_add_u32 v15, v15, 7, s5
    s_waitcnt lgkmcnt(0)
    {es(5)}
    s_mov_b64 exec, 0xffff
    global_load_dword v74, v15, {s(pWE,2)}
    s_mov_b64 exec, -1
    s_barrier
    s_branch L_setup
L_e_bin:
    v_lshlrev_b32 v16, 3, {v(TID)}
    s_mul_i32 s7, s2, {CH*4}
    ds_write_b64 v16, v[44:45] offset:{HIST}
    v_lshl_add_u32 v15, {v(TID)}, 4, s7
    v_cmp_gt_u32 vcc, {CHT:#x}, {v(TID)}
    s_mov_b32 s6, {E*4}
    v_cmp_gt_u32 {s(sEX2,2)}, s6, v15
    v_lshrrev_b32 v14, 1, v15
    s_waitcnt lgkmcnt(0)
    {es(5)}
    s_and_b64 {s(sEX2,2)}, {s(sEX2,2)}, vcc
    s_mov_b64 exec, {s(sEX2,2)}
    s_cbranch_execz L_b0
    global_load_dwordx4 v[48:51], v15, {s(pDST,2)}
    global_load_dwordx4 v[52:55], v15, {s(pSRC,2)}
    global_load_dwordx2 v[46:47], v14, {s(pEA,2)}
L_b0:
    s_mov_b64 exec, -1
    s_setprio {g.opt.get("bprio", 2)}
    s_barrier
    s_branch L_setup
L_e_gemm:
    s_sub_u32 s30, {s(sWV)}, 8
    s_lshl_b32 s5, s30, 12
    v_lshrrev_b32 v48, 4, v0
    v_and_b32 v49, 15, v0
    s_and_b32 s6, s30, 1
    s_lshl_b32 s7, s6, 5
    s_and_b32 s31, s30, 6
    s_add_u32 s7, s7, s31
    s_lshl_b32 s7, s7, 8
    s_add_u32 s7, s7, {s(sB)}
    s_lshl_b32 s7, s7, 8
    s_lshl_b32 s6, s6, 3
    v_add_u32 v52, s6, v48
    v_xor_b32 v52, v52, v49
    v_lshlrev_b32 v52, 4, v52
    v_lshl_add_u32 v52, v48, 19, v52
    v_add_u32 v18, s7, v52
    v_xor_b32 v19, 64, v18
    v_add_u32 v19, 0x10000, v19
    s_lshl_b32 s31, s30, 11
    s_add_u32 m0, s31, {HR}
    s_mov_b32 {s(rH+2)}, {N*256}
    s_mov_b32 {s(rH+3)}, 0x20000
    s_waitcnt lgkmcnt(0)
    {es(5)}
    s_mov_b64 {s(rH,2)}, {s(pH,2)}
    v_lshlrev_b32 v50, 2, v48
    buffer_load_dwordx4 v18, {s(rH,4)}, 0 offen lds
    s_add_u32 m0, s31, {HR+1024}
    v_xor_b32 v50, v50, v49
    buffer_load_dwordx4 v19, {s(rH,4)}, 0 offen lds
    v_lshlrev_b32 v50, 4, v50
    v_lshl_add_u32 v50, v48, 8, v50
    v_add_u32 v47, s5, v50
    v_add_u32 v50, 0x8000, v47
    s_add_u32 {s(sK2)}, s5, {PR}
    s_add_u32 m0, s5, {WR}
    s_barrier
    global_load_lds_dwordx4 v50, {s(pWE,2)}
    global_load_lds_dwordx4 v50, {s(pWE,2)} offset:1024
    global_load_lds_dwordx4 v50, {s(pWE,2)} offset:2048
    global_load_lds_dwordx4 v50, {s(pWE,2)} offset:3072
L_setup:
    {EPLOAD}
    {es(6)}
    """)
    common_setup(g)
    g(f"""
    {es(7)}
    s_cmp_ge_u32 {s(sWV)}, 8
    s_cbranch_scc1 L_p_gemm
    s_cmp_eq_u32 {s(sWV)}, 7
    s_cbranch_scc1 L_p_misc
    """)
    for i in range(4): g(f"v_mov_b32 v{74+2*i}, 1")
    g(f"""
    v_lshlrev_b32 v17, 5, v0
    v_lshlrev_b32 v14, 4, v0
    v_lshlrev_b32 v15, 2, {v(TID)}
    v_lshlrev_b32 v18, 4, {v(TID)}
    s_lshl_b32 s31, s2, 12
    s_add_u32 s31, s31, {WT}
    s_mov_b32 s5, 0x0c050100
    """)
    if g.opt.get("binwait"): spin(g, G1, 8, ZR, 90, "L_bw")
    g(f"""
    s_mov_b64 exec, {s(sEX2,2)}
    s_waitcnt vmcnt(2)
    {es(8)}
    """)
    for i in range(4):
        g(f"""
        v_lshlrev_b32_sdwa v{62+i}, 2, v{48+i} dst_sel:DWORD dst_unused:UNUSED_PAD src0_sel:DWORD src1_sel:BYTE_1
        v_lshlrev_b32_sdwa v{58+i}, 3, v{48+i} dst_sel:DWORD dst_unused:UNUSED_PAD src0_sel:DWORD src1_sel:BYTE_0
        v_lshlrev_b32 v{75+2*i}, v{62+i}, v{ONE}
        ds_add_rtn_u64 v[{82+2*i}:{83+2*i}], v{58+i}, v[{74+2*i}:{75+2*i}] offset:{HIST}
        """)
    arrive(g, S1, ZR, ONE)
    for i in range(4): g(f"v_lshrrev_b32 v{58+i}, 1, v{58+i}")
    spin(g, S1, 7, ZR, 90, "L_s1")
    g.stamp(1)
    g(f"""
    ds_read_b128 v[92:95], v17 offset:{HIST}
    ds_read_b128 v[96:99], v17 offset:{HIST+16}
    ds_read_b64 v[100:101], v16 offset:{HIST}
    {EPFIX}
    s_and_b32 s6, {s(sNON)}, 0xffc00000
    s_and_b32 s7, {s(sNON)}, 0xfff0
    v_mov_b32 v102, {s(sNON)}
    v_not_b32 v103, {s(sNON)}
    """)
    for i in range(4): g(f"v_bfe_u32 v{83+2*i}, v{83+2*i}, v{62+i}, 4\nv_or_b32 v{83+2*i}, s7, v{83+2*i}")
    g(f"""
    s_waitcnt lgkmcnt(1)
    v_add_u32 v104, v92, v94
    v_add3_u32 v104, v104, v96, v98
    v_mov_b32 v105, v104
    """)
    scan64(g, [105])
    g(f"""
    v_sub_u32 v108, v105, v104
    v_add_u32 v109, v108, v92
    v_add_u32 v110, v109, v94
    v_add_u32 v111, v110, v96
    ds_write_b128 v14, v[108:111] offset:{PREF}
    ds_read_b32 v106, v15 offset:{PREF}
    s_mov_b64 exec, {s(sEX2,2)}
    """)
    for i in range(4): g(f"ds_read_b32 v{92+i}, v{58+i} offset:{PREF}")
    g(f"""
    s_mov_b64 exec, -1
    s_cmp_ge_u32 {s(sWV)}, 4
    s_cbranch_scc1 L_b2
    s_waitcnt lgkmcnt(4)
    v_lshl_or_b32 v100, v100, 16, v106
    buffer_store_dwordx4 v[100:103], v18, {s(rWS,4)}, s31 offen sc1
    s_waitcnt vmcnt(1)
    s_branch L_b3
L_b2:
    s_waitcnt vmcnt(0)
L_b3:
    {es(9)}
    s_mov_b64 exec, {s(sEX2,2)}
    s_mov_b32 s31, 0xffff0000
    """)
    for i in range(4):
        g(f"""
        v_perm_b32 v{66+2*i}, v{48+i}, v{52+i}, s5
        {f"v_lshl_or_b32 v{67+2*i}, v{46+i//2}, 16, v{83+2*i}" if i % 2 == 0 else f"v_and_or_b32 v{67+2*i}, v{46+i//2}, s31, v{83+2*i}"}
        v_or_b32 v{66+2*i}, s6, v{66+2*i}
        s_waitcnt lgkmcnt(3)
        v_add_lshl_u32 v{92+i}, v{92+i}, v{82+2*i}, 3
        ds_write_b64 v{92+i}, v[{66+2*i}:{67+2*i}] offset:{SORT}
        """)
    arrive(g, S2, ZR, ONE)
    g(f"""
    v_add_u32 v12, 0xfffff000, v18
    s_mul_i32 s5, s2, 12544
    s_add_u32 s5, s5, {WREC}
    """)
    spin(g, S2, 14, ZR, 90, "L_s2")
    g.stamp(2)
    g(f"""
    s_cmp_lt_u32 {s(sWV)}, 4
    s_cbranch_scc1 L_prep
    """)
    for r in range(5): g(f"ds_read_b128 v[{48+4*r}:{51+4*r}], v12 offset:{SORT+3072*r}")
    for r in range(4):
        g(f"""
        s_waitcnt lgkmcnt({4-r})
        buffer_store_dwordx4 v[{48+4*r}:{51+4*r}], v12, {s(rWS,4)}, s5 offen sc1
        s_add_u32 s5, s5, 3072
        """)
    nu = g.opt.get("nu", 10); nlo = g.opt.get("nlo", 0)
    g(f"""
    s_waitcnt lgkmcnt(0)
    s_cmp_lg_u32 {s(sWV)}, 4
    s_cbranch_scc1 L_join
    s_mov_b64 exec, 0xffff
    buffer_store_dwordx4 v[64:67], v12, {s(rWS,4)}, s5 offen sc1
    s_mov_b64 exec, -1
    s_branch L_join
L_p_misc:
    s_lshr_b32 s5, s2, 2
    s_and_b32 s6, s5, 7
    s_and_b32 s7, s2, 3
    v_and_b32 v12, 3, v0
    v_lshlrev_b32 v12, 1, v12
    s_cmp_ge_u32 s6, 4
    s_cbranch_scc1 L_m1
    s_lshl_b32 s7, s7, 3
    v_add_u32 v17, s7, v12
    s_mov_b32 s31, {NLOG2E:#x}
    s_branch L_m2
L_m1:
    s_and_b32 s30, s7, 1
    s_lshl_b32 s30, s30, 4
    s_lshr_b32 s7, s7, 1
    s_lshl_b32 s7, s7, 2
    s_add_u32 s7, s7, s30
    v_and_b32 v17, 4, v12
    v_add3_u32 v17, v17, v12, s7
    s_mov_b32 s31, 1.0
L_m2:
    s_lshl_b32 s6, s6, 13
    s_lshr_b32 s7, s5, 4
    s_lshl_b32 s7, s7, 6
    s_add_u32 s6, s6, s7
    s_and_b32 s7, s5, 8
    s_add_u32 s6, s6, s7
    v_lshrrev_b32 v14, 4, v0
    v_bfe_u32 v16, v0, 2, 2
    v_lshlrev_b32 v16, 1, v16
    v_lshl_add_u32 v16, v14, 4, v16
    v_lshl_add_u32 v16, v17, 8, v16
    v_add_u32 v16, s6, v16
    v_lshl_add_u32 v12, v0, 8, {s(sB)}
    v_mul_u32_u24 v12, 6, v12
    s_lshr_b32 s5, s2, 3
    s_mul_i32 s5, s5, {19*128}
    v_min_u32 v15, 18, v0
    v_lshl_add_u32 v15, v15, 7, s5
    v_lshlrev_b32 v19, 2, v0
    v_lshlrev_b32 v18, 3, v0
    v_add_u32 v17, 0x10000, v18
    """)
    if g.opt.get("miscwait"): spin(g, G1, 8, ZR, 90, "L_mw")
    g(f"""
    buffer_load_dword v72, v15, {s(rPOS,4)}, 0 offen
    global_load_ushort v64, v16, {s(pWH,2)}
    global_load_ushort v65, v16, {s(pWH,2)} offset:256
    global_load_dword v66, v19, {s(pWX,2)}
    global_load_dwordx2 v[76:77], v17, {s(pWE,2)}
    buffer_load_ushort v68, v12, {s(rPOS,4)}, 0 offen
    buffer_load_ushort v69, v12, {s(rPOS,4)}, 0 offen offset:2
    buffer_load_ushort v70, v12, {s(rPOS,4)}, 0 offen offset:4
    s_waitcnt vmcnt(0) lgkmcnt(0)
    {EPFIX}
    v_lshlrev_b32 v64, 16, v64
    v_lshlrev_b32 v65, 16, v65
    v_mul_f32 v64, s31, v64
    v_mul_f32 v65, s31, v65
    v_cvt_pk_bf16_f32 v64, v64, v65
    s_lshl_b32 s5, s2, 8
    s_add_u32 s5, s5, {WIMG}
    buffer_store_dword v64, v19, {s(rWS,4)}, s5 offen sc1
    v_lshl_or_b32 v68, v69, 16, v68
    v_lshlrev_b32 v69, 16, v70
    ds_write_b32 v19, v66 offset:{WX}
    ds_write_b64 v18, v[68:69] offset:{DT}
    ds_write_b64 v18, v[76:77] offset:{WL}
    {es(8)}
    """)
    spin(g, S2, 14, ZR, 90, "L_pw")
    g.stamp(2)
    posrun(g, f"s_mov_b32 s7, {32+4*nu}", 42-4*nu, 12)
    g(f"s_waitcnt vmcnt({42-4*nu})")
    drain_signal(g, "L_ds0")
    if nlo < 8:
        spin(g, G1, 24, ZR, 90, "L_pw2")
        posrun(g, f"s_mov_b32 s7, {4*nlo}", 32-4*nlo, 12)
    late_setup(g)
    g("s_waitcnt vmcnt(0)")
    g.stamp(3)
    g(f"""
    s_branch L_join2
L_p_gemm:
    s_mov_b32 m0, {s(sK2)}
    s_setprio {g.opt.get('gprio', 1)}
    global_load_lds_dwordx4 v47, {s(pWE,2)}
    global_load_lds_dwordx4 v47, {s(pWE,2)} offset:1024
    global_load_lds_dwordx4 v47, {s(pWE,2)} offset:2048
    global_load_lds_dwordx4 v47, {s(pWE,2)} offset:3072
    s_add_u32 s31, s31, {YR}
    v_lshl_add_u32 v17, v0, 4, s31
    s_and_b32 s5, {s(sWV)}, 1           ; nt
    s_bfe_u32 s6, {s(sWV)}, 0x20001     ; ct
    v_lshrrev_b32 v52, 5, v0            ; h
    v_bfe_u32 v53, v0, 2, 2             ; r'
    v_xor_b32 v54, s6, v53
    v_lshlrev_b32 v54, 6, v54
    v_lshl_add_u32 v54, v53, 8, v54
    v_lshl_add_u32 v54, v52, 11, v54
    v_bfe_u32 v55, v0, 4, 1
    v_lshl_add_u32 v54, v55, 5, v54
    v_and_b32 v55, 3, v0
    v_lshl_add_u32 v12, v55, 3, v54
    v_and_b32 v53, 31, v0
    s_lshl_b32 s7, s5, 13
    v_lshl_add_u32 v54, v53, 8, s7
    v_xor_b32 v55, v52, v49
    v_lshl_add_u32 v14, v55, 4, v54
    s_lshl_b32 s7, s6, 2
    v_lshl_add_u32 v55, v52, 1, s7
    v_xor_b32 v55, v55, v49
    v_lshl_add_u32 v15, v55, 4, v54
    v_add_u32 v15, {YR}, v15
    v_xor_b32 v16, 16, v15
    v_add_u32 v45, {PR}, v12
    """)
    g(srd(rBPW, pWS, N*256, off=WBP))
    for st in range(8): g(f"v_xor_b32 v{64+4*st}, {st*32:#x}, v14")
    g("s_waitcnt vmcnt(4)")
    arrive(g, G1, ZR, ONE); spin(g, G1, 8, ZR, 46, "L_g1")
    g.stamp(1)
    for st in range(8):
        g(f"ds_read_b128 {v(64+4*st,4)}, v{64+4*st} offset:{HR}")
        for u in range(2): g(f"ds_read_b64_tr_b16 {v(96+4*st+2*u,2)}, v12 offset:{WR+st*4096+u*1024}")
        if st >= 4:
            k = st - 4
            g("s_waitcnt lgkmcnt(12)")
            g(mf32(48, 96+4*k, 64+4*k, '0' if k == 0 else 48))
    for k in range(4, 8):
        g(f"s_waitcnt lgkmcnt({3*(7-k)})")
        g(mf32(48, 96+4*k, 64+4*k, 48))
    g(EPFIX)
    scale_cvt(g, 48)
    g(f"""
    ds_write_b128 v15, v[48:51]
    ds_write_b128 v16, v[52:55]
    {es(8)}
    s_waitcnt vmcnt(0)
    """)
    arrive(g, G1, ZR, ONE); spin(g, G1, 16, ZR, 46, "L_g2")
    g.stamp(2)
    g(f"""
    ds_read_b128 v[56:59], v17
    ds_read_b128 v[60:63], v17 offset:1024
    """)
    for st in range(6):
        for u in range(2): g(f"ds_read_b64_tr_b16 {v(96+4*st+2*u,2)}, v45 offset:{st*4096+u*1024}")
    g(f"""
    s_waitcnt lgkmcnt(13)
    buffer_store_dwordx4 v[56:59], v18, {s(rBPW,4)}, 0 offen sc1
    s_waitcnt lgkmcnt(12)
    buffer_store_dwordx4 v[60:63], v19, {s(rBPW,4)}, 0 offen sc1
    s_waitcnt lgkmcnt(8)
    """)
    for st in range(6, 8):
        for u in range(2): g(f"ds_read_b64_tr_b16 {v(96+4*st+2*u,2)}, v45 offset:{st*4096+u*1024}")
    arrive(g, G1, ZR, ONE)
    for st in range(8):
        g(f"s_waitcnt lgkmcnt({min(13, 15-2*st)})")
        g(mf32(48, 64+4*st, 96+4*st, '0' if st == 0 else 48))
    scale_cvt(g, 48)
    g(f"""
    ds_write_b128 v17, v[48:51]
    ds_write_b128 v17, v[52:55] offset:1024
    {es(9)}
L_join:
    s_setprio 0
    """)
    late_setup(g)
    g("s_waitcnt vmcnt(0)")
    g.stamp(3)
    drain_signal(g, "L_ds1")
    g("L_join2:")
    spin(g, SL, 4, ZR, 48, "L_sl")
    listload(g)
    g(f"""
    s_branch L_p1
L_prep:
    """)
    if g.opt.get("posg2"): spin(g, G1, 16, ZR, 90, "L_pw4")
    posrun(g, f"s_mul_i32 s7, {s(sWV)}, {nu}\ns_add_u32 s7, s7, 32", nu, 12)
    late_setup(g)
    if nlo:
        spin(g, G1, 24, ZR, 90, "L_pw3")
        posrun(g, f"s_mul_i32 s7, {s(sWV)}, {nlo}", nlo, 12)
    g(f"""
    s_lshl_b32 s5, {s(sB)}, 4
    s_add_u32 s5, s5, {WT}
    v_lshl_add_u32 v62, {v(TID)}, 12, s5
    s_not_b32 s6, {s(sNON)}
    s_mov_b32 {s(sCNT)}, 0x100000
    s_movk_i32 s5, 784
    v_mul_u32_u24 v79, s5, {v(TID)}
    v_lshl_or_b32 v79, {v(TID)}, 20, v79
    s_mov_b32 s8, 0x0c040c00
    s_mov_b32 s9, 0x0c050c01
    s_mov_b32 s10, 0x0c060c02
    s_mov_b32 s11, 0x0c070c03
    {g.opt.get("prepoll", "s_waitcnt vmcnt(0)")}
L_poll:
    buffer_load_dwordx4 v[68:71], v62, {s(rWS,4)}, 0 offen sc1
    s_sub_u32 {s(sCNT)}, {s(sCNT)}, 1
    s_waitcnt vmcnt(0)
    v_cmp_ne_u32 vcc, {s(sNON)}, v70
    v_cmp_ne_u32 {s(sEX,2)}, s6, v71
    s_cbranch_scc1 L_polled
    s_or_b64 exec, vcc, {s(sEX,2)}
    s_cbranch_execnz L_poll
L_polled:
    s_mov_b64 exec, -1
    """)
    g.stamp(3)
    steps = [f"row_shr:{k} row_mask:0xf bank_mask:0xf bound_ctrl:1" for k in (1, 2, 4, 8)]
    steps += ["row_bcast:15 row_mask:0xa bank_mask:0xf", "row_bcast:31 row_mask:0xc bank_mask:0xf"]
    sc = lambda r, k: f"v_add_u32_dpp v{r}, v{r}, v{r} {steps[k]}"
    g(f"""
    v_and_b32 v85, 0x7ff, v68              ; start
    v_bfe_u32 v91, v68, 16, 11             ; count
    v_add3_u32 v77, v85, v91, 1
    v_lshrrev_b32 v78, 1, v85
    v_lshrrev_b32 v76, 1, v77
    v_sub_u32 v76, v76, v78                ; granules
    v_mov_b32 v84, v76
    v_and_b32 v70, 0x0f0f0f0f, v69
    v_lshrrev_b32 v71, 4, v69
    {sc(84,0)}
    v_and_b32 v71, 0x0f0f0f0f, v71
    v_add_u32 v78, v78, v79                ; list entry
    {sc(84,1)}
    v_perm_b32 v72, v71, v70, s8
    v_perm_b32 v73, v71, v70, s9
    {sc(84,2)}
    v_perm_b32 v74, v71, v70, s10
    v_perm_b32 v75, v71, v70, s11
    {sc(84,3)}
    v_mov_b64 v[80:81], v[72:73]
    v_mov_b64 v[82:83], v[74:75]
    {sc(84,4)}
    v_lshlrev_b32 v93, 30, v85
    v_add_u32 v70, v70, v71
    {sc(84,5)}
    s_mov_b32 exec_lo, 0
    s_brev_b32 exec_hi, 1
    ds_add_rtn_u32 v90, v{ZR}, v84 offset:{NGC}
    s_mov_b64 exec, -1
    """)
    scan64(g, [80, 81, 82, 83])
    g(f"""
    s_mov_b32 exec_lo, 0
    s_brev_b32 exec_hi, 1
    ds_add_rtn_u64 v[86:87], v{ZR}, v[80:81] offset:{GC2}
    ds_add_rtn_u64 v[88:89], v{ZR}, v[82:83] offset:{GC2+8}
    s_mov_b64 exec, -1
    s_waitcnt lgkmcnt(2)
    v_readlane_b32 s31, v90, 63
    v_and_b32 v93, 0x40000000, v93         ; first half not mine
    v_not_b32 v77, v77
    v_add_u32 v84, s31, v84
    v_lshlrev_b32 v77, 31, v77             ; last half not mine
    v_cmp_ge_u32 vcc, 0x400, v84
    v_sub_u32 v94, v84, v76
    v_lshlrev_b32 v94, 2, v94
    v_lshlrev_b32 v84, 2, v84
    v_or_b32 v93, v93, v78
    s_mov_b64 exec, vcc
    """)
    for i in range(13):
        g(f"""
        v_cmpx_lt_u32 {s(sEX,2) if i == 0 else "vcc"}, {i}, v76
        {"" if i == 0 else "v_add_u32 v78, 1, v78"}
        {"s_cbranch_execz L_listed" if i >= 6 else ""}
        ds_write_b32 v94, v{93 if i == 0 else 78} offset:{LIST+4*i}
        """)
    g(f"""
L_listed:
    s_mov_b64 exec, {s(sEX,2)}
    ds_or_b32 v84, v77 offset:{LIST-4}
    s_mov_b64 exec, -1
    v_sad_u8 v70, v70, 0, 0
    v_cmp_ne_u32 vcc, v70, v91
    v_cmp_lt_u32 {s(sEX,2)}, 24, v91
    s_or_b64 exec, vcc, {s(sEX,2)}
    ds_write_b32 v{ZR}, v{ONE} offset:{ESC}
    """)
    arrive(g, SL, ZR, ONE)
    g(f"""
    v_sub_u32 v80, v80, v72
    v_sub_u32 v81, v81, v73
    v_sub_u32 v82, v82, v74
    v_sub_u32 v83, v83, v75
    """)
    spin(g, SL, 4, ZR, 48, "L_sl2")
    listload(g)
    g(f"""
    v_readlane_b32 s5, v86, 63
    v_readlane_b32 s6, v87, 63
    v_readlane_b32 s7, v88, 63
    v_readlane_b32 s30, v89, 63
    s_setprio 0
    v_add_u32 v80, s5, v80
    v_add_u32 v81, s6, v81
    v_add_u32 v82, s7, v82
    v_add_u32 v83, s30, v83
    ds_write_b128 v18, v[80:83] offset:{BASE}
L_p1:
    """)

def listload(g):
    g.stamp(4)
    g(f"""
    ds_read_b32 v48, v14 offset:{LIST}
    ds_read_b64 v[50:51], v{ZR} offset:{NGC}
    ds_read_u16 v52, v22 offset:{GC2}
    v_bfrev_b32 v53, 2
    s_waitcnt lgkmcnt(1)
    v_cmp_lt_u32 {s(sEX2,2)}, {v(T2)}, v50
    v_and_b32 v49, 0x3ffff, v48
    v_lshlrev_b32 v49, 4, v49
    v_cndmask_b32 v49, v53, v49, {s(sEX2,2)}
    buffer_load_dwordx4 v[64:67], v49, {s(rWS,4)}, {s(sK1)} offen sc1
    s_waitcnt lgkmcnt(0)
    """)

def drain_signal(g, lab):
    g(f"""
    s_mov_b64 exec, 1
    ds_add_rtn_u32 v58, v{ZR}, v{ONE} offset:{DRC}
    s_lshl_b32 s5, s2, 7
    s_add_u32 s5, s5, {WF}
    v_mov_b32 v57, {s(sNON)}
    s_waitcnt lgkmcnt(0)
    v_cmp_eq_u32 vcc, 11, v58
    s_and_b64 exec, exec, vcc
    s_cbranch_execz {lab}
    buffer_store_dword v57, v{ZR}, {s(rWS,4)}, s5 offen sc1
{lab}:
    s_mov_b64 exec, -1
    """)

def late_setup(g):
    g(f"""
    v_mov_b32 {v(DP+7)}, {v(DP+1)}
    v_add_u32 {v(DP+5)}, {USTR:#x}, {v(DP+1)}
    v_add_u32 {v(DP+3)}, {2*USTR:#x}, {v(DP+1)}
    v_add_u32 {v(DP+1)}, {3*USTR:#x}, {v(DP+1)}
    v_mov_b32 v45, 0x3fff
    v_mov_b64 v[46:47], 0
    v_lshlrev_b32 v14, 2, {v(T2)}
    """)
    for i in range(16): g(f"v_mov_b64 {v(A0+2*i,2)}, 0")

def group_addr(g):
    g(f"""
    s_mul_i32 s6, {s(sG)}, {CAP*16}
    s_add_u32 s6, s6, {RA}
    v_lshrrev_b32 v56, 5, {v(LANE)}
    v_and_b32 v57, 31, {v(LANE)}
    v_lshl_add_u32 {v(AWX)}, v57, 4, s6
    v_bfe_u32 v58, {v(LANE)}, 2, 2
    v_lshl_add_u32 v58, v56, 2, v58
    v_lshl_add_u32 {v(AWS)}, v58, 4, s6
    v_lshrrev_b32 v58, 3, {v(LANE)}
    v_lshl_add_u32 {v(AIDX)}, v58, 4, s6
    """)

def common_setup(g):
    g(srd(rWS, pWS, 0x1000000)); g(srd(rPOS, pPOS, N*6))
    g(srd(rBPG, pWS, N, off=WBP-3*USTR, stride=256))
    g(srd(rOUT, pOUT, N*256)); g(srd(rOUTP, pOUT, N*6, off=N*256))
    g(f"""
    s_and_b32 s5, {s(sWV)}, 7
    s_cmp_eq_u32 s5, 7
    s_cselect_b32 s5, 0x200, 0
    v_xor_b32 {v(T2)}, s5, {v(TID)}
    s_and_b32 {s(sHALF)}, {s(sWV)}, 1
    s_lshr_b32 {s(sSLOT)}, {s(sWV)}, 2
    s_lshr_b32 {s(sG)}, {s(sWV)}, 1
    s_mul_i32 {s(sSTG)}, {s(sWV)}, {STGS}
    s_add_u32 {s(sSTG)}, {s(sSTG)}, {PR}
    s_mov_b32 {s(sK1)}, {WREC}
    s_mov_b32 {s(sMORE)}, 0
    """)
    group_addr(g)
    g(f"""
    s_lshl_b32 s5, {s(sHALF)}, 7
    v_lshl_add_u32 v41, v57, 1, s5
    v_mov_b32 {v(Y0+1)}, 0
    v_mov_b64 {v(Y0+2,2)}, 0
    v_mov_b32 {v(Y1+1)}, 0
    v_mov_b64 {v(Y1+2,2)}, 0
    ; selectors
    v_bfe_u32 v58, {v(LANE)}, 3, 1
    v_and_b32 v59, 3, {v(LANE)}
    v_lshl_add_u32 v58, v58, 2, v59
    v_lshlrev_b32 v58, 4, v58
    v_lshrrev_b32 v60, 1, {v(LANE)}
    v_xor_b32 v60, v60, {v(LANE)}
    v_and_b32 v60, 16, v60
    v_lshl_or_b32 v58, v60, 20, v58
    v_and_b32 v60, 4, {v(LANE)}
    v_lshl_or_b32 v58, v60, 20, v58
    v_xor_b32 v60, 0x400000, v58
    ds_read_b128 {v(SEL0,4)}, v58
    ds_read_b128 {v(SEL1,4)}, v60
    ; loop constants
    v_lshrrev_b32 v60, 4, {v(LANE)}
    v_and_b32 v61, 7, {v(LANE)}
    v_xor_b32 v60, v60, v61
    v_lshl_add_u32 {v(DP+1)}, v60, 4, s5
    v_lshrrev_b32 v23, 3, {v(LANE)}
    v_lshrrev_b32 v60, 1, v61
    v_lshlrev_b32 v20, 1, v23
    v_lshrrev_b32 v20, v60, v20
    v_xor_b32 v20, v20, v61
    v_bfe_i32 v20, v20, 0, 1
    v_mul_u32_u24 v21, {CAP:#x}, v61
    v_add_u32 v21, {RA//16}, v21
    v_lshlrev_b32 v22, 1, v61
    v_lshrrev_b32 v62, 3, v57
    v_mul_u32_u24 v62, {USTR:#x}, v62
    v_lshl_add_u32 v62, v61, 7, v62
    v_xor_b32 v60, v60, v56
    v_lshlrev_b32 v60, 4, v60
    v_add3_u32 {v(FA0)}, v62, v60, {s(sSTG)}
    v_xor_b32 v60, 32, v60
    v_add3_u32 {v(FA1)}, v62, v60, {s(sSTG)}
    s_lshl_b32 s5, {s(sG)}, 9
    s_lshl_b32 s7, {s(sHALF)}, 13
    s_add_u32 s5, s5, s7
    v_lshl_add_u32 {v(XA)}, v57, 4, s5
    v_bfe_u32 v57, {v(LANE)}, 2, 3
    s_and_b32 s5, {s(sG)}, 1
    s_lshl_b32 s5, s5, 3
    v_add_u32 v58, s5, v57
    s_lshl_b32 s6, {s(sHALF)}, 3
    v_lshl_add_u32 v60, v56, 1, s6
    v_xor_b32 v60, v60, v58
    v_lshlrev_b32 v60, 4, v60
    v_lshl_add_u32 {v(EA0)}, v58, 8, v60
    v_lshl_add_u32 v57, v57, 3, {s(sG)}
    v_lshlrev_b32 v59, 2, v59
    v_lshl_add_u32 {v(EA1)}, v57, 4, v59
    ; F address v42, list address v43, pad record v44..47
    v_and_b32 v42, 15, {v(LANE)}
    s_lshl_b32 s5, {s(sWV)}, 11
    s_add_u32 s5, s5, {WF}
    v_lshl_add_u32 v42, v42, 7, s5
    """)

def geo_issue(g, w0, t, basel=None):
    g(f"""
    v_and_b32 v{t+7}, 0x3fff, v{w0}
    v_mad_u32_u24 v{t+8}, v{t+7}, 6, s31
    v_bfe_u32 v{t+9}, v{w0}, 16, 6
    ds_read_u16_d16_hi v{t}, v{t+8}
    ds_read_u16_d16_hi v{t+1}, v{t+8} offset:2
    ds_read_u16_d16_hi v{t+2}, v{t+8} offset:4
    v_lshlrev_b32 v{t+8}, 3, v{t+9}
    ds_read_b64 v[{t+4}:{t+5}], v{t+8} offset:{DT}
    """)
    if basel is not None:
        g(f"""
        v_and_b32 v{t+8}, 7, v{t+9}
        v_lshl_add_u32 v{t+8}, v{t+8}, 1, v{basel}
        ds_read_u16 v{t+3}, v{t+8} offset:{BASE}
        """)

def geo_pre(g, w0, t, o):
    g(f"""
    v_lshrrev_b32 v{t+9}, 3, v{t+9}
    v_and_b32 v{t+6}, 0xffff0000, v{w0+1}
    v_lshl_or_b32 v{o+1}, v{t+9}, 20, v{t+7}
    v_mul_f32 v{t+6}, {NLOG2E:#x}, v{t+6}
    """)
def geo_math(g, w0, t, o):
    g(f"""
    v_lshlrev_b32 v{t+7}, 16, v{t+4}
    v_and_b32 v{t+4}, 0xffff0000, v{t+4}
    v_sub_f32 v{t+2}, v{t+5}, v{t+2}
    v_sub_f32 v{t}, v{t+7}, v{t}
    v_sub_f32 v{t+1}, v{t+4}, v{t+1}
    v_mul_f32 v{t+4}, v{t+2}, v{t+2}
    v_fmac_f32 v{t+4}, v{t}, v{t}
    v_cvt_pk_bf16_f32 v{o+2}, 1.0, v{t}
    v_fmac_f32 v{t+4}, v{t+1}, v{t+1}
    v_cvt_pk_bf16_f32 v{o+3}, v{t+1}, v{t+2}
    v_mul_f32 v{t+4}, {NLOG2E:#x}, v{t+4}
    v_cvt_pk_bf16_f32 v{o}, v{t+4}, v{t+6}
    """)

def fpoll_loop(g, r, d, lab, pre=""):
    g(f"""
    s_mov_b32 {s(sCNT)}, 0x100000
    {pre}
{lab}:
    s_waitcnt vmcnt(0)
{lab}c:
    v_cmp_ne_u32 vcc, {s(sNON)}, v{d}
    s_sub_u32 {s(sCNT)}, {s(sCNT)}, 1
    s_cbranch_scc1 {lab}d
    s_and_b64 exec, exec, vcc
    s_cbranch_execz {lab}d
    buffer_load_dword v{d}, v{r}, {s(rWS,4)}, 0 offen sc1
    s_branch {lab}
{lab}d:
    s_mov_b64 exec, -1
    """)

def pads(g):
    g(f"""
    s_add_u32 {s(sNT)}, {s(sN)}, 31
    s_lshr_b32 {s(sNT)}, {s(sNT)}, 5
    s_lshl_b32 s7, {s(sNT)}, 5
    s_sub_u32 s7, s7, {s(sN)}
    s_mul_i32 s6, {s(sG)}, {CAP}
    s_add_u32 s6, s6, {s(sN)}
    s_add_u32 s6, s6, {RA//16}
    v_add_lshl_u32 v59, {v(LANE)}, s6, 4
    s_bfm_b64 exec, s7, 0
    ds_write_b128 v59, v[44:47]
    s_mov_b64 exec, -1
    """)

def ypick(g):
    g(f"""
    v_add_u32 {v(XA)}, {YR}, {v(XA)}
    s_lshl_b32 s6, {s(sSLOT)}, 12
    s_add_u32 s6, s6, {YR}
    v_add_u32 {v(EA0)}, s6, {v(EA0)}
    v_mov_b64 v[20:21], 0
    s_mov_b32 exec_lo, 0
    ds_read_b128 {v(Y0,4)}, {v(XA)}
    ds_read_b128 {v(Y1,4)}, {v(XA)} offset:4096
    s_not_b64 exec, exec
    ds_read_u16 {v(Y0)}, v41 offset:{WL}
    ds_read_u16 v20, v41 offset:{WL+256}
    ds_read_u16 {v(Y1)}, v41 offset:{WL+64}
    ds_read_u16 v21, v41 offset:{WL+320}
    s_mov_b64 exec, -1
    """)
def ymerge(g):
    g(f"""
    v_lshl_or_b32 {v(Y0)}, v20, 16, {v(Y0)}
    v_lshl_or_b32 {v(Y1)}, v21, 16, {v(Y1)}
    """)

def phase2(g):
    g(f"""
    s_mov_b32 s31, {PR}
    s_mov_b32 s8, 0xffc00000
    v_sub_u32 v52, v52, v21
    v_lshl_or_b32 v50, v51, 16, v50
    v_xor_b32 v53, v52, v20
    v_cmp_lt_u32 vcc, {CAP:#x}, v52
    v_sub_u32 v53, v53, v20
    s_movk_i32 s5, 0x400
    v_cmp_lt_u32 {s(sEX,2)}, s5, v50
    v_add_u32_dpp v53, v53, v53 quad_perm:[1,0,3,2] row_mask:0xf bank_mask:0xf
    v_bfe_u32 v54, v48, 20, 8
    s_or_b64 vcc, vcc, {s(sEX,2)}
    v_add_u32_dpp v53, v53, v53 quad_perm:[2,3,0,1] row_mask:0xf bank_mask:0xf
    s_cbranch_scc1 L_slow
    {"s_branch L_slow" if g.opt.get("forceslow") else ""}
    v_lshlrev_b32 v54, 4, v54
    v_add_u32_dpp v53, v53, v53 row_half_mirror row_mask:0xf bank_mask:0xf
    v_lshlrev_b32 v55, 1, v48
    v_sub_u32 v56, 0, v53
    v_max_i32 v53, v53, v56
    v_lshl_or_b32 v53, v53, 3, v23
    v_cmp_le_i32 vcc, 0, v55
    v_cmp_le_i32 {s(sEX,2)}, 0, v48
    v_min_u32_dpp v53, v53, v53 row_ror:8 row_mask:0xf bank_mask:0xf
    s_and_b64 s[10:11], vcc, {s(sEX2,2)}
    s_and_b64 s[12:13], {s(sEX,2)}, {s(sEX2,2)}
    v_readlane_b32 s5, v53, 0
    v_readlane_b32 s6, v53, 16
    v_readlane_b32 s7, v53, 32
    v_readlane_b32 s30, v53, 48
    s_min_u32 s5, s5, s6
    s_min_u32 s7, s7, s30
    s_min_u32 s5, s5, s7
    s_lshl_b32 s5, s5, 1
    s_lshr_b32 s5, s5, {s(sSLOT)}
    s_and_b32 s5, s5, {0 if g.opt.get("noflip") else 1}
    s_cbranch_scc0 L_nf
    s_bitcmp1_b32 {s(sG)}, 0
    s_movk_i32 s6, {CAP*16}
    s_cselect_b32 s6, {(-CAP*16) & 0xffffffff:#x}, s6
    s_xor_b32 {s(sG)}, {s(sG)}, 1
    v_add_u32 {v(AWX)}, s6, {v(AWX)}
    v_add_u32 {v(AWS)}, s6, {v(AWS)}
    v_add_u32 {v(AIDX)}, s6, {v(AIDX)}
    v_xor_b32 {v(XA)}, 0x200, {v(XA)}
    v_xor_b32 {v(EA0)}, 0x880, {v(EA0)}
    v_xor_b32 {v(EA1)}, 16, {v(EA1)}
L_nf:
    v_readlane_b32 {s(sN)}, v52, {s(sG)}
    s_waitcnt lgkmcnt(0)
    s_barrier
    """)
    ypick(g)
    pads(g)
    g(f"""
    s_mov_b32 {s(sCNT)}, 0x100000
    s_mov_b64 exec, {s(sEX2,2)}
L_rp:
    s_waitcnt vmcnt(0)
    v_bfi_b32 v56, s8, v64, v65
    v_bfi_b32 v57, s8, v66, v67
    v_and_b32 v56, {TAGMASK:#x}, v56
    v_and_b32 v57, {TAGMASK:#x}, v57
    v_cmp_ne_u32 vcc, {s(sTAG)}, v56
    v_cmp_ne_u32 {s(sEX,2)}, {s(sTAG)}, v57
    s_sub_u32 {s(sCNT)}, {s(sCNT)}, 1
    s_cbranch_scc1 L_rpd
    s_or_b64 exec, vcc, {s(sEX,2)}
    s_cbranch_execz L_rpd
    buffer_load_dwordx4 v[64:67], v49, {s(rWS,4)}, {s(sK1)} offen sc1
    s_branch L_rp
L_rpd:
    s_mov_b64 exec, -1
    """)
    g.stamp(5)
    bl = g.opt.get("blind")
    if bl:
        g(f"""
        s_lshr_b32 s5, s2, 3
        s_lshr_b32 s6, s5, 1
        s_lshl_b32 s7, {s(sWV)}, 4
        s_add_u32 s6, s6, s7
        s_and_b32 s5, s5, 1
        s_lshl_b32 s5, s5, 7
        v_lshl_add_u32 v92, {v(LANE)}, 8, s6
        s_bfm_b64 exec, {bl}, 0
        buffer_load_dword v92, v92, {s(rBPG,4)}, s5 idxen offset:{3*USTR} sc1
        s_mov_b64 exec, -1
        """)
    g(f"""
    s_cmp_eq_u64 {s(sEX2,2)}, 0
    s_cbranch_scc1 L_gd
    s_mov_b64 exec, s[10:11]
    """)
    geo_issue(g, 64, 68, 54)
    g("s_mov_b64 exec, s[12:13]")
    geo_issue(g, 66, 80, 54)
    for k, (w0, t, o, ex, wt) in enumerate(((64, 68, 56, "s[10:11]", 5), (66, 80, 60, "s[12:13]", 1))):
        g(f"s_mov_b64 exec, {ex}\nv_and_b32 v{t+8}, 15, v{w0+1}")
        geo_pre(g, w0, t, o)
        g(f"s_waitcnt lgkmcnt({wt})")
        geo_math(g, w0, t, o)
        g(f"""
        v_add_lshl_u32 v{t+3}, v{t+3}, v{t+8}, 4
        ds_write_b128 v{t+3}, v[{o}:{o+3}]
        """)
    g("s_mov_b64 exec, -1\nL_gd:")
    g.stamp(6)
    g("s_waitcnt lgkmcnt(0)")
    ymerge(g)
    g(f"""
    s_cmp_lg_u32 {s(sWV)}, 7
    s_cbranch_scc1 L_go
    v_lshlrev_b32 v64, 7, {v(LANE)}
    s_mov_b32 {s(sCNT)}, 0x100000
    s_mov_b32 s8, {WF}
    s_mov_b32 s9, {WF+8192}
    s_mov_b32 s10, {WF+16384}
    s_mov_b32 s11, {WF+24576}
L_fp:
    buffer_load_dword v65, v64, {s(rWS,4)}, s8 offen sc1
    buffer_load_dword v66, v64, {s(rWS,4)}, s9 offen sc1
    buffer_load_dword v67, v64, {s(rWS,4)}, s10 offen sc1
    buffer_load_dword v68, v64, {s(rWS,4)}, s11 offen sc1
    s_sub_u32 {s(sCNT)}, {s(sCNT)}, 1
    s_waitcnt vmcnt(0)
    s_cbranch_scc1 L_fpd
    v_xor_b32 v65, {s(sNON)}, v65
    v_xor_b32 v66, {s(sNON)}, v66
    v_xor_b32 v67, {s(sNON)}, v67
    v_xor_b32 v68, {s(sNON)}, v68
    v_or3_b32 v65, v65, v66, v67
    v_or_b32 v65, v65, v68
    v_cmp_ne_u32 vcc, 0, v65
    s_and_b64 exec, exec, vcc
    s_cbranch_execnz L_fp
L_fpd:
    s_mov_b64 exec, -1
    """)
    g(f"""
L_go:
    s_waitcnt lgkmcnt(0)
    s_barrier
    """)
    if g.opt.get("warm"):
        g(f"""
        s_lshr_b32 s5, s2, 3
        s_lshr_b32 s6, s5, 1
        s_lshl_b32 s7, {s(sWV)}, 4
        s_add_u32 s6, s6, s7
        s_and_b32 s5, s5, 1
        s_lshl_b32 s5, s5, 7
        v_lshl_add_u32 v92, {v(LANE)}, 8, s6
        buffer_load_dword v92, v92, {s(rBPG,4)}, s5 idxen offset:{3*USTR} sc1
        s_waitcnt vmcnt(0)
        s_sleep 64
        s_barrier
        """)
    g.stamp(7)

def slowpath(g):
    g(f"""
L_slow:
    """)
    g("s_waitcnt lgkmcnt(0)\ns_barrier")
    ypick(g)
    g("s_waitcnt lgkmcnt(0)")
    ymerge(g)
    g(f"v_lshrrev_b32 v40, 2, {v(TID)}")
    g(f"buffer_load_dword v43, v42, {s(rWS,4)}, 0 offen sc1")
    fpoll_loop(g, 42, 43, "L_fs")
    g(f"""
    s_lshl_b32 s5, {s(sB)}, 4
    s_add_u32 s5, s5, {WT}
    v_lshl_add_u32 v41, v40, 12, s5
    buffer_load_dword v44, v41, {s(rWS,4)}, 0 offen sc1
    v_and_b32 v46, 3, {v(LANE)}
    v_lshlrev_b32 v46, 1, v46
    v_mul_u32_u24 v40, 0x3100, v40
    s_waitcnt vmcnt(0)
    v_and_b32 v47, 0x7ff, v44
    v_add_lshl_u32 v47, v47, v46, 3
    v_add_u32 {v(STA)}, v40, v47
    v_bfe_u32 v47, v44, 16, 11
    v_sub_u32 v47, v47, v46
    v_lshlrev_b32 {v(STB)}, 8, v47
L_round:
    v_ashrrev_i32 v40, 8, {v(STB)}
    """)
    for u in range(3):
        g(f"""
        v_cmp_lt_i32 vcc, {8*u}, v40
        s_and_b64 exec, exec, vcc
        s_cbranch_execz L_rl
        buffer_load_dwordx4 {v(64+4*u,4)}, {v(STA)}, {s(rWS,4)}, {s(sK1)} offen offset:{64*u} sc1
        """)
    g(f"""
L_rl:
    s_mov_b64 exec, -1
    v_mov_b32 v41, 1
    s_waitcnt lgkmcnt(0)
    s_barrier
    s_waitcnt vmcnt(0)
    """)
    for r in range(6):
        k = 8*(r//2) + (r % 2)
        g(f"""
        v_and_b32 v42, {1 << r}, {v(STB)}
        v_cmp_lt_i32 vcc, {k}, v40
        v_cmp_eq_u32 {s(sEX,2)}, 0, v42
        v_mov_b32 v{80+r}, -1
        v_bfe_u32 v{86+r}, v{64+2*r}, 16, 3
        s_and_b64 exec, vcc, {s(sEX,2)}
        v_lshlrev_b32 v42, 2, v{86+r}
        ds_add_rtn_u32 v{80+r}, v42, v41 offset:{GC}
        s_mov_b64 exec, -1
        """)
    g(f"s_movk_i32 s5, {CAP}")
    for r in range(6):
        g(f"""
        s_waitcnt lgkmcnt(5)
        v_cmp_gt_u32 vcc, s5, v{80+r}
        v_mad_u32_u24 v42, v{86+r}, s5, v{80+r}
        v_lshlrev_b32 v42, 4, v42
        s_mov_b64 exec, vcc
        ds_write_b64 v42, v[{64+2*r}:{65+2*r}] offset:{RA}
        v_or_b32 {v(STB)}, {1 << r}, {v(STB)}
        s_mov_b64 exec, -1
        v_add_u32 v{80+r}, 1, v{80+r}
        """)
    g(f"""
    v_max3_u32 v42, v80, v81, v82
    v_max3_u32 v42, v42, v83, v84
    v_max_u32 v42, v42, v85
    v_cmp_ge_u32 vcc, s5, v42
    v_add_u32 v43, 0xc0, {v(STA)}
    v_add_u32 v44, 0xffffffe8, v40
    v_lshlrev_b32 v44, 8, v44
    v_cndmask_b32 {v(STA)}, {v(STA)}, v43, vcc
    v_mov_b32 v45, 0
    v_cndmask_b32 {v(STB)}, {v(STB)}, v44, vcc
    v_cmp_lt_i32 vcc, 0xff, {v(STB)}
    s_mov_b64 exec, vcc
    ds_write_b32 v45, v41 offset:{MORE}
    s_mov_b64 exec, -1
    s_lshl_b32 s5, {s(sG)}, 2
    v_mov_b32 v42, s5
    s_waitcnt lgkmcnt(0)
    s_barrier
    ds_read_b32 v43, v42 offset:{GC}
    ds_read_b32 v44, v45 offset:{MORE}
    s_lshl_b32 s5, {s(sHALF)}, 6
    v_add_u32 v40, s5, {v(LANE)}
    s_mul_i32 s6, {s(sG)}, {CAP}
    s_add_u32 s6, s6, {RA//16}
    v_add_lshl_u32 v41, v40, s6, 4
    s_mov_b32 s31, {PR}
    s_waitcnt lgkmcnt(0)
    v_readfirstlane_b32 {s(sN)}, v43
    v_readfirstlane_b32 {s(sMORE)}, v44
    s_min_u32 {s(sN)}, {s(sN)}, {CAP}
L_geo:
    v_cmp_gt_u32 vcc, {s(sN)}, v40
    s_mov_b64 exec, vcc
    s_cbranch_execz L_geod
    ds_read_b64 v[64:65], v41
    s_waitcnt lgkmcnt(0)
    """)
    geo_issue(g, 64, 68)
    geo_pre(g, 64, 68, 48)
    g("s_waitcnt lgkmcnt(0)")
    geo_math(g, 64, 68, 48)
    g(f"""
    ds_write_b128 v41, v[48:51]
    v_add_u32 v40, 0x80, v40
    v_add_u32 v41, 0x800, v41
    s_branch L_geo
L_geod:
    s_mov_b64 exec, -1
    """)
    group_addr(g)
    g("v_mov_b32 v44, 0\nv_mov_b32 v45, 0x3fff\nv_mov_b64 v[46:47], 0")
    pads(g)
    g("s_branch L_go")
    g(f"""
L_again:
    s_barrier
    v_lshlrev_b32 v40, 2, {v(LANE)}
    v_mov_b32 v41, 0
    s_mov_b64 exec, 0x1ff
    ds_write_b32 v40, v41 offset:{GC}
    s_mov_b64 exec, -1
    """)
    posrun(g, f"s_min_u32 s7, {s(sWV)}, 14\ns_mul_i32 s7, s7, 5", 5, 42)
    g("s_branch L_round\nL_codeend:")

def idxreads(toff): return "\n".join(f"ds_read_u16 {v(DP+2*u)}, {v(AIDX)} offset:{toff*512+u*128+4}" for u in range(4))
def dma(): return "\n".join(f"buffer_load_dwordx4 {v(DP+2*u,2)}, {s(rBPG,4)}, 0 idxen offen offset:{u*USTR} sc1 lds" for u in range(4))
def wread(S, b): return f"""ds_read_u16_d16_hi {v(S+2)}, {v(AWS)} offset:{256*b+6}
    ds_read_u16_d16_hi {v(S+3)}, {v(AWS)} offset:{256*b+134}"""
OPT = {}
def sxad(S):
    if OPT.get("pka", 1): return f"v_pk_add_f32 {v(S+2,2)}, {v(S+2,2)}, {v(AWS,2)} op_sel:[0,1] op_sel_hi:[1,1]"
    return f"""v_xad_u32 {v(S+2)}, {v(S+2)}, {v(MYN)}, {v(AWS)}
    v_xad_u32 {v(S+3)}, {v(S+3)}, {v(MYN)}, {v(AWS)}"""
def sxad1(S):
    if OPT.get("pka", 1): return f"v_add_f32 {v(S+2)}, {v(S+2)}, {v(MYN)}\nv_add_f32 {v(S+3)}, {v(S+3)}, {v(MYN)}"
    return sxad(S)
def strd(S, b):
    return f"""ds_read_b64_tr_b16 {v(S,2)}, {v(S+2)} offset:{256*b+8}
    ds_read_b64_tr_b16 {v(S+2,2)}, {v(S+3)} offset:{256*b+136}"""
def sread(S, b, pk=True): return (sxad(S) if pk else sxad1(S)) + "\n" + strd(S, b)
def incs():
    if OPT.get("pka", 1):
        return f"v_pk_add_f32 {v(AWX,2)}, {v(AWX,2)}, s[8:9]\nv_pk_add_f32 {v(AWS,2)}, {v(AWS,2)}, s[8:9]"
    return f"v_add_u32 {v(AWX)}, 0x200, {v(AWX)}\nv_add_u32 {v(AWS)}, 0x200, {v(AWS)}\nv_add_u32 {v(AIDX)}, 0x200, {v(AIDX)}"
def xread(toff):
    return f"""s_mov_b32 exec_lo, 0
    ds_read_b128 {v(X,4)}, {v(XA)}
    s_not_b64 exec, exec
    ds_read_b128 {v(X,4)}, {v(AWX)} offset:{512*toff}
    s_mov_b64 exec, -1"""
def LG(n): return f"s_waitcnt lgkmcnt({n})\n"

def half(g, Dc, o, ins, n=8):
    def at(k):
        if k in ins: g(ins[k])
    pk = n == 8 and not g.opt.get("nopk")
    for i in range(n):
        at(f"E{i}"); g(f"v_exp_f32 {v(T+i)}, {v(Dc+o+i)}")
    at("A")
    if pk:
        for i in range(4): g(f"v_pk_add_f32 {v(T+2*i,2)}, {v(T+2*i,2)}, 1.0 op_sel_hi:[1,0]")
    else:
        for i in range(n): g(f"v_add_f32 {v(T+i)}, 1.0, {v(T+i)}")
    at("A4"); at("P1")
    for i in range(n):
        at(f"R{i}"); g(f"v_rcp_f32 {v(T+i)}, {v(T+i)}")
    at("M")
    if pk:
        for i in range(4): g(f"v_pk_mul_f32 {v(T+2*i,2)}, {v(T+2*i,2)}, {v(Dc+o+2*i,2)}")
    else:
        for i in range(n): g(f"v_mul_f32 {v(T+i)}, {v(T+i)}, {v(Dc+o+i)}")
    at("P2")
    for i in range(n//2): g(f"v_cvt_pk_bf16_f32 {v(Dc+o+i)}, {v(T+2*i)}, {v(T+2*i+1)}")
    if n == 4: g(f"v_mov_b64 {v(Dc+o+2,2)}, 0")
    at("Z")

segB1 = mf32(A1, D1+8, SB, A1); segA1 = mf32(A1, D1, SA, A1)
segB0 = mf32(A0, D0+8, SB, A0); segA0 = mf32(A0, D0, SA, A0)
def st1(D, Y): return mf32(D, X, Y, '0'), mf32(D, F0, SEL0, D), mf32(D, F1, SEL1, D)

def tile(g, full):
    f1, a1, b1 = st1(D1, Y1); f0, a0, b0 = st1(D0, Y0)
    ni = 4 if full else 0
    h0 = {"E2": LG(0) + segB1, "A4": sxad(SA), "P1": wread(SB, 1) + "\n" + strd(SA, 0), "R0": f1,
          "P2": f"ds_read_u16 {v(XA)}, {v(AWX)} offset:518\n" + a1}
    h1 = {"E2": LG(1) + b1, "A4": sxad(SB), "P1": strd(SB, 1), "R0": segA0,
          "P2": LG(2) + xread(1) + ("\n" + idxreads(2) if full else "")}
    h2 = {"E2": LG(2+ni) + segB0,
          "P1": f"s_waitcnt vmcnt(0) lgkmcnt({ni})\nds_read_b128 {v(F0,4)}, {v(FA0)}\nds_read_b128 {v(F1,4)}, {v(FA1)}", "R0": f0,
          "P2": LG(0) + a0}
    h3 = {"E2": b0, "A4": incs(),
          "P1": f"ds_read_b128 {v(F0,4)}, {v(FA0)} offset:64\nds_read_b128 {v(F1,4)}, {v(FA1)} offset:64", "R0": segA1,
          "P2": wread(SA, 0) + ("\n" + LG(2) + dma() + f"\ns_sub_u32 {s(sNT)}, {s(sNT)}, 1" if full else "")}
    if g.opt.get("w1e"):
        h0["P2"] = LG(0) + h0["P2"]; h1["E2"] = b1
    half(g, D0, 0, h0); half(g, D0, 8, h1); half(g, D1, 0, h2); half(g, D1, 8, h3)

def last(g, nq):
    f1, a1, b1 = st1(D1, Y1)
    if nq >= 3:
        nb = 8 if nq == 4 else 4
        half(g, D0, 0, {"E2": LG(0) + segB1, "A4": sxad(SA), "P1": wread(SB, 1) + "\n" + strd(SA, 0), "R0": f1, "R3": a1})
        half(g, D0, 8, {"E0": LG(0) + b1, "A4": sxad(SB) if nb == 8 else sxad1(SB), "P1": strd(SB, 1), "R0": segA0}, nb)
        half(g, D1, 0, {"E2": LG(0) + segB0})
        half(g, D1, 8, {"E2": segA1}, nb)
        g("s_nop 1\n" + segB1)
    elif nq == 2:
        half(g, D0, 0, {"E0": LG(0) + segB1, "E3": f1, "A4": sxad(SA), "P1": strd(SA, 0), "R0": a1, "R3": b1})
        half(g, D1, 0, {"E2": LG(0) + segA0})
        g("s_nop 1\n" + segA1)
    else:
        half(g, D0, 0, {"E0": LG(0) + segB1, "E2": f1, "A": sread(SA, 0, False), "P1": a1, "R2": b1}, 4)
        g("s_nop 2")
        half(g, D1, 0, {"E2": LG(0) + segA0}, 4)
        g("s_nop 1\n" + segA1)

def prio(g, p, lab):
    lo = g.opt.get("band", 1)
    if lo > 3: return
    g(f"s_cmp_lt_u32 {s(sSLOT)}, {lo}\ns_cbranch_scc1 {lab}\ns_setprio {p}\n{lab}:")

def mainloop(g):
    f0, a0, b0 = st1(D0, Y0)
    g(f"""
    s_cmp_eq_u32 {s(sNT)}, 0
    s_cbranch_scc1 L_done
    s_setprio 3
    """)
    prio(g, 2, "L_pr2")
    g(f"""
    {g.opt.get("stag","")}
    {idxreads(0)}
    ds_read_u16 {v(XA)}, {v(AWX)} offset:6
    s_mov_b32 m0, {s(sSTG)}
    s_waitcnt lgkmcnt(1)
    {dma()}
    {idxreads(1)}
    s_waitcnt lgkmcnt(4)
    {xread(0)}
    v_bfe_u32 v56, {v(LANE)}, 4, 1
    v_and_b32 v57, 3, {v(LANE)}
    v_lshl_add_u32 v56, v56, 2, v57
    v_lshlrev_b32 v56, 20, v56
    v_sub_f32 {v(MYN)}, {v(AWS)}, v56
    s_movk_i32 s8, 0x200
    s_movk_i32 s9, 0x200
    v_mov_b64 {v(SB,2)}, 0
    v_mov_b64 {v(SB+2,2)}, 0
    v_mov_b64 {v(D1+8,2)}, 0
    v_mov_b64 {v(D1+10,2)}, 0
    s_add_u32 s5, {s(sN)}, 31
    s_bfe_u32 {s(sK2)}, s5, 0x20003
    s_waitcnt lgkmcnt(0)
    {f0}
    s_waitcnt vmcnt(0)
    ds_read_b128 {v(F0,4)}, {v(FA0)}
    ds_read_b128 {v(F1,4)}, {v(FA1)}
    s_waitcnt lgkmcnt(1)
    {a0}
    s_waitcnt lgkmcnt(0)
    {b0}
    ds_read_b128 {v(F0,4)}, {v(FA0)} offset:64
    ds_read_b128 {v(F1,4)}, {v(FA1)} offset:64
    {wread(SA, 0)}
    s_waitcnt lgkmcnt(2)
    s_nop 4
    s_cmp_lt_u32 {s(sNT)}, 2
    s_cbranch_scc1 L_last
    {dma()}
    s_sub_u32 {s(sNT)}, {s(sNT)}, 3
    s_cbranch_scc1 L_pen
L_tile:
    """)
    tile(g, True)
    g(f"""
    s_cbranch_scc0 L_tile
L_pen:
    """)
    prio(g, 1, "L_pr1")
    tile(g, False)
    g("L_last:")
    prio(g, 0, "L_pr0")
    g(f"""
    s_cmp_eq_u32 {s(sK2)}, 0
    s_cbranch_scc1 L_last1
    s_cmp_eq_u32 {s(sK2)}, 1
    s_cbranch_scc1 L_last2
    s_cmp_eq_u32 {s(sK2)}, 2
    s_cbranch_scc1 L_last3
    """)
    last(g, 4); g("s_branch L_done\nL_last3:")
    last(g, 3); g("s_branch L_done\nL_last2:")
    last(g, 2); g("s_branch L_done\nL_last1:")
    last(g, 1)
    g(f"""
L_done:
    s_setprio 3
    s_cmp_lg_u32 {s(sMORE)}, 0
    s_cbranch_scc1 L_again
    """)
    g.stamp(8)

def epilogue(g):
    g(f"""
    v_lshrrev_b32 v71, 5, {v(LANE)}
    s_lshl_b32 s6, {s(sHALF)}, 7
    v_lshl_add_u32 v71, v71, 3, s6
    ds_read2_b64 v[40:43], v71 offset0:{WX//8} offset1:{WX//8+2}
    ds_read2_b64 v[44:47], v71 offset0:{WX//8+4} offset1:{WX//8+6}
    ds_read2_b64 v[48:51], v71 offset0:{WX//8+8} offset1:{WX//8+10}
    ds_read2_b64 v[52:55], v71 offset0:{WX//8+12} offset1:{WX//8+14}
    v_lshrrev_b32 v75, 4, {v(EA1)}
    v_bfe_u32 v74, {v(EA1)}, 2, 2
    v_lshlrev_b32 v77, v74, 1
    v_lshl_add_u32 v77, v75, 3, v77
    v_and_b32 v77, -2, v77
    ds_read_u16_d16_hi v76, v77 offset:{DT-2}
    v_xor_b32 v68, 16, {v(EA0)}
    v_xor_b32 v69, 64, {v(EA0)}
    v_xor_b32 v70, 0x50, {v(EA0)}
    """)
    for i in range(16): g(f"v_cvt_pk_bf16_f32 {v(A0+i)}, {v(A0+2*i)}, {v(A0+2*i+1)}")
    g(f"""
    s_mov_b32 s6, 0x11111111
    s_mov_b32 exec_lo, s6
    s_mov_b32 exec_hi, s6
    ds_write_b128 {v(EA0)}, {v(A0,4)}
    ds_write_b128 v68, {v(A0+4,4)}
    ds_write_b128 v69, {v(A0+8,4)}
    ds_write_b128 v70, {v(A0+12,4)}
    s_mov_b64 exec, 1
    s_lshl_b32 s6, {s(sSLOT)}, 2
    v_mov_b32 v72, s6
    v_mov_b32 v73, 1
    ds_add_u32 v72, v73 offset:{SLOTC}
    s_lshl_b32 s6, {s(sG)}, 2
    v_mov_b32 v72, s6
    s_mov_b64 exec, -1
    s_waitcnt lgkmcnt(5)
    {mf32(80, 40, A0, '0')}
    s_lshl_b32 s6, {s(sWV)}, 7
    v_lshl_add_u32 v77, {v(LANE)}, 2, s6
    {mf32(80, 44, A0+4, 80)}
    v_xor_b32 v78, 0x80, v77
    {mf32(80, 48, A0+8, 80)}
    v_lshl_add_u32 v75, v75, 8, {s(sB)}
    v_lshlrev_b32 v74, 1, v74
    {mf32(80, 52, A0+12, 80)}
    v_mad_u32_u24 v75, v75, 6, v74
    v_add_u32 v75, -2, v75
    s_mov_b32 exec_hi, 0
    s_nop 7
    s_nop 0
    ds_write_b32 v77, v80 offset:{PP}
    s_mov_b64 exec, 1
    ds_add_rtn_u32 v79, v72, v73 offset:{PAIRC}
    s_waitcnt lgkmcnt(0)
    v_readfirstlane_b32 s6, v79
    s_mov_b64 exec, -1
    s_cmp_eq_u32 s6, 0
    s_cbranch_scc1 L_nopos
    ds_read_b32 v81, v78 offset:{PP}
    s_mov_b32 s6, 0xeeeeeeee
    s_mov_b32 exec_lo, s6
    s_mov_b32 exec_hi, 0
    s_waitcnt lgkmcnt(0)
    v_add_f32 v80, v80, v81
    v_fmac_f32 v76, {NLN2:#x}, v80
    v_cvt_pk_bf16_f32 v76, v76, v76
    buffer_store_short v76, v75, {s(rOUTP,4)}, 0 offen
    s_mov_b64 exec, -1
L_nopos:
    s_cmp_lg_u32 {s(sSLOT)}, 0
    s_cbranch_scc1 L_exit
    s_lshl_b32 s5, {s(sWV)}, 14
    s_add_u32 s5, s5, {WIMG}
    v_lshlrev_b32 v12, 4, {v(LANE)}
    """)
    for f in range(16):
        if f and f % 4 == 0: g("s_add_u32 s5, s5, 4096")
        g(f"buffer_load_dwordx4 {v(64+4*f,4)}, v12, {s(rWS,4)}, s5 offen offset:{(f%4)*1024} sc1")
    g(f"""
    v_lshrrev_b32 v13, 4, {v(LANE)}
    v_and_b32 v14, 15, {v(LANE)}
    v_lshrrev_b32 v15, 3, v14
    v_and_b32 v16, 7, v14
    v_xor_b32 v17, v13, v14
    v_lshlrev_b32 v17, 4, v17
    v_lshl_add_u32 v17, v14, 8, v17
    v_add_u32 v4, {YR}, v17
    v_xor_b32 v5, 64, v4
    v_xor_b32 v6, 0x80, v4
    v_xor_b32 v7, 0xc0, v4
    v_and_b32 v17, 4, v16
    v_add_u32 v17, v17, v16
    v_lshl_add_u32 v17, v15, 2, v17
    v_xor_b32 v18, v13, v17
    v_lshlrev_b32 v18, 4, v18
    v_lshl_add_u32 v8, v17, 8, v18
    v_add_u32 v8, {HR}, v8
    v_xor_b32 v9, 64, v8
    v_xor_b32 v10, 0x80, v8
    v_xor_b32 v11, 0xc0, v8
    s_lshl_b32 s5, {s(sWV)}, 6
    v_xor_b32 v3, s5, v8
    v_lshl_add_u32 v17, v16, 3, v15
    v_lshlrev_b32 v17, 16, v17
    v_lshl_add_u32 v17, v13, 4, v17
    s_lshl_b32 s6, {s(sB)}, 8
    s_add_u32 s6, s6, s5
    v_add_u32 v2, s6, v17
    v_mov_b32 v1, 0
    s_waitcnt vmcnt(0)
    """)
    stf = g.opt.get("outflag", "")
    RES = (64, 72, 96, 104)
    for sl in range(4):
        o = sl*4096
        g(f"""
        ds_read_b128 v[12:15], v8 offset:{o}
        ds_read_b128 v[16:19], v9 offset:{o}
        ds_read_b128 v[20:23], v10 offset:{o}
        ds_read_b128 v[24:27], v11 offset:{o}
        """)
        for ks in range(4):
            g(f"s_waitcnt lgkmcnt({3-ks})")
            for a in range(2): g(mf16(32+8*sl+4*a, 64+32*a+4*ks, 12+4*ks, '0' if ks == 0 else 32+8*sl+4*a))
    for sl in range(4): g(f"ds_read_b128 v[{12+4*sl}:{15+4*sl}], v3 offset:{sl*4096}")
    g(f"v_mov_b32 v8, {NLN2:#x}")
    for sl in range(4):
        g(f"s_waitcnt lgkmcnt({3-sl})")
        for i in range(4): g(f"v_lshlrev_b32 v{RES[sl]+2*i}, 16, v{12+4*sl+i}\nv_and_b32 v{RES[sl]+2*i+1}, 0xffff0000, v{12+4*sl+i}")
    sleeps = g.opt.get("sleeps", (1, 4, 1, 1))
    for sl in range(4):
        o = sl*4096; H = 32+8*sl; R = RES[sl]
        g(f"""
        s_mov_b32 {s(sCNT)}, 0x1000000
L_sw{sl}:
        ds_read_b32 v28, v1 offset:{SLOTC+4*sl}
        s_waitcnt lgkmcnt(0)
        v_readfirstlane_b32 s5, v28
        s_cmp_ge_u32 s5, 4
        s_cbranch_scc1 L_sg{sl}
        s_sleep {sleeps[sl]}
        s_sub_u32 {s(sCNT)}, {s(sCNT)}, 1
        s_cbranch_scc0 L_sw{sl}
L_sg{sl}:
        ds_read_b128 v[12:15], v4 offset:{o}
        ds_read_b128 v[16:19], v5 offset:{o}
        ds_read_b128 v[20:23], v6 offset:{o}
        ds_read_b128 v[24:27], v7 offset:{o}
        """)
        for ks in range(4):
            g(f"s_waitcnt lgkmcnt({3-ks})")
            for a in range(2): g(mf16(H+4*a, 64+32*a+16+4*ks, 12+4*ks, H+4*a))
        g("s_nop 6")
        for i in range(8): g(f"v_exp_f32 v{12+i}, v{H+i}")
        for i in range(4):
            g(f"v_pk_add_f32 v[{12+2*i}:{13+2*i}], v[{12+2*i}:{13+2*i}], 1.0 op_sel_hi:[1,0]")
            g(f"v_pk_mul_f32 v[{H+2*i}:{H+1+2*i}], v[{H+2*i}:{H+1+2*i}], v[8:9] op_sel_hi:[1,0]")
        for i in range(8): g(f"v_rcp_f32 v{12+i}, v{12+i}")
        for i in range(4): g(f"v_pk_fma_f32 v[{R+2*i}:{R+1+2*i}], v[{H+2*i}:{H+1+2*i}], v[{12+2*i}:{13+2*i}], v[{R+2*i}:{R+1+2*i}]")
        for i in range(4): g(f"v_cvt_pk_bf16_f32 v{R+i}, v{R+2*i}, v{R+1+2*i}")
        g(f"buffer_store_dwordx4 v[{R}:{R+3}], v2, {s(rOUT,4)}, 0 offen {stf}")
        if sl < 3: g("v_add_u32 v2, 0x20000, v2")
    g(f"""
L_exit:
    s_lshl_b32 s5, s2, 4
    s_add_u32 s5, s5, {s(sWV)}
    s_cmp_lg_u32 s5, 4
    s_cbranch_scc1 L_exit2
    v_mov_b32 v1, {WEP}
    v_mov_b32 v2, {s(sNON)}
    s_mov_b64 exec, 1
    buffer_store_dword v2, v1, {s(rWS,4)}, 0 offen
L_exit2:
    """)
    if g.stamps:
        g.stamp(9)
        g(f"""
        s_waitcnt vmcnt(0)
        s_memrealtime s[96:97]
        s_lshl_b32 s5, s2, 4
        s_add_u32 s5, s5, {s(sWV)}
        s_lshl_b32 s5, s5, 6
        s_add_u32 s5, s5, {WST}
        v_mov_b32 v1, s5
        s_waitcnt lgkmcnt(0)
        s_mov_b64 exec, 1
        """)
        for i in range(11): g(f"v_mov_b32 v2, s{76+2*i}\nglobal_store_dword v1, v2, {s(pWS,2)} offset:{4*i}")
    if g.opt.get("amp"):
        i0, i1, wg, wv, amp = g.opt["amp"]
        g(f"""
        s_cmp_lg_u32 s2, {wg}
        s_cbranch_scc1 L_end
        s_cmp_lg_u32 {s(sWV)}, {wv}
        s_cbranch_scc1 L_end
        s_sub_u32 s5, s{76+2*i1}, s{76+2*i0}
        s_min_u32 s5, s5, 10000
        s_mul_i32 s5, s5, {amp}
L_amp:
        s_memrealtime s[6:7]
        s_waitcnt lgkmcnt(0)
        s_sub_u32 s6, s6, s76
        s_cmp_lt_u32 s6, s5
        s_cbranch_scc1 L_amp
        """)
    g("L_end:\ns_endpgm")

def build(stamps=False, opt=None):
    g = G(stamps, opt); OPT.clear(); OPT.update(g.opt)
    phase1(g); phase2(g); mainloop(g); epilogue(g); slowpath(g)
    body = g.text()
    off = g.opt.get("wsoff", 0)
    body = body.replace("    WSADD\n", f"    s_add_u32 s28, s28, {off}\n    s_addc_u32 s29, s29, 0\n" if off else "")
    if off: body = body.replace(f"s_add_u32 s5, s5, {WST}\n", f"s_add_u32 s5, s5, {WST}\n    s_sub_u32 s28, s28, {off}\n    s_subb_u32 s29, s29, 0\n")
    if g.opt.get("align", 1):
        body, st = align.align(body, [("L_tile", "L_done")])
        if g.opt.get("v"): print("align", st)
    txt = HEAD + f"; @launch grid=(256,1,1) block=(1024,1,1) lds={LDS}\n"
    txt += f'''.amdgcn_target "amdgcn-amd-amdhsa--gfx950"
.text
.globl {NAME}_kernel
.p2align 8
.type {NAME}_kernel,@function
{NAME}_kernel:
{body}.section .rodata,"a"
.p2align 6
.amdhsa_kernel {NAME}_kernel
  .amdhsa_next_free_vgpr 128
  .amdhsa_next_free_sgpr 102
  .amdhsa_accum_offset 128
  .amdhsa_group_segment_fixed_size 0
  .amdhsa_kernarg_size 88
  .amdhsa_user_sgpr_count 2
  .amdhsa_user_sgpr_kernarg_segment_ptr 1
  .amdhsa_system_sgpr_workgroup_id_x 1
  .amdhsa_float_denorm_mode_32 3
.end_amdhsa_kernel
'''
    for b in hazard.check(body): print("HAZARD need %d have %d:\n   %s\n   %s" % (b[2], b[3], b[0], b[1]))
    return txt

if __name__ == "__main__":
    opt = eval(sys.argv[3]) if len(sys.argv) > 3 else {}
    open(sys.argv[1], "w").write(build(stamps=len(sys.argv) > 2 and sys.argv[2] == "st", opt=opt))
```

```python
import sys
from common import HEAD, NAME, srd
import hazard, align

N = 12500; E = 400000
CH = 1564; CHT = CH // 4
CAP = 352
OHT = 0; GC2 = 0x80; NGC = 0x90; ESC = 0x94; G1 = 0x98; DRC = 0x9c
GC = 0xA0; MORE = 0xC0; S1 = 0xC4; S2 = S1; SL = 0xCC; SLOTC = 0xD0; PAIRC = 0xE0; WX = 0x100
RA = 0x200
WR = RA; SORT = WR + 32768
QR = SORT + 12544
HIST = QR; NIB = QR + 1024; PREF = QR + 3072; LIST = QR; PP = QR
BASE = QR + 4096; DT = BASE + 4096; WL = DT + 512
HR = WL + 512; YR = HR + 16384; PR = YR + 16384; LDS = 163840
STGS = 4352; USTR = 1088
assert RA + 8*CAP*16 <= QR and HR % 256 == 0 and PR + 75008 <= LDS and PR + 16 * STGS <= LDS
WEP = 0; WT = 0x100000; WREC = 0x200000; WBP = 0x600000; WIMG = 0xA00000; WF = 0xA20000; WST = 0x6000000
NLOG2E = 0xbfb8aa3b; NLN2 = 0xbf317218
TAGMASK = 0xffc0fff0; TMASK = 0xf800f800
LANE, STA, STB, XA, FA0, FA1, AWX, AIDX, AWS, MYN, EA0, EA1 = range(12)
DP = 12; X = 20; Y0 = 24; Y1 = 28; SEL0 = 32; SEL1 = 36; SA = 40; SB = 44; F0 = 48; F1 = 52; T = 56
D0 = 64; D1 = 80; A0 = 96; A1 = 112
TID = STA; T2 = STB
sB, sWV, sPW, sRND = 3, 4, 100, 101
pH, pPOS, pEA, pSRC, pDST, pWE, pWX, pWH, pOUT, pDBG, pWS = 8, 10, 12, 14, 16, 18, 20, 22, 24, 26, 28
rH, rPOS, rWS, rBPW, rBPG, rOUT, rOUTP = 32, 36, 40, 44, 48, 52, 56
sNON, sG, sHALF, sSLOT, sN, sNT, sSTG, sMORE, sEX, sEX2, sCNT, sK1, sK2, sTAG = 60, 61, 62, 63, 64, 65, 66, 67, 68, 70, 72, 73, 74, 75

def v(a, n=1): return f"v{a}" if n == 1 else f"v[{a}:{a+n-1}]"
def s(a, n=1): return f"s{a}" if n == 1 else f"s[{a}:{a+n-1}]"

class G:
    def __init__(self, stamps=False, opt=None):
        self.L = []; self.stamps = stamps; self.opt = opt or {}
    def __call__(self, txt):
        for l in txt.strip("\n").split("\n"):
            l = l.strip()
            if l: self.L.append(l if l.endswith(":") else "    " + l)
    def es(self, i):
        return f"s_memrealtime s[{76+2*i}:{77+2*i}]" if self.stamps and self.opt.get("early") == 1 else ""
    def e2(self, i):
        return f"s_memrealtime s[{76+2*i}:{77+2*i}]" if self.stamps and self.opt.get("early") == 2 else ""
    def stamp(self, i):
        if self.stamps and self.opt.get("early") and i >= 5: return
        if self.stamps and self.opt.get("loopst") and 1 <= i <= 6: return
        if self.stamps:
            c = self.opt.get("cyc")
            if c:
                if i in (1, 2): return
                if i in c: self(f"s_memtime s[{78+2*c.index(i)}:{79+2*c.index(i)}]")
            self(f"s_memrealtime s[{76+2*i}:{77+2*i}]")
    def text(self): return "\n".join(self.L) + "\n"

def mf32(d, a, b, c): return f"v_mfma_f32_32x32x16_bf16 {v(d,16)}, {v(a,4)}, {v(b,4)}, {c if c == '0' else v(c,16)}"
def mf16(d, a, b, c): return f"v_mfma_f32_16x16x32_bf16 {v(d,4)}, {v(a,4)}, {v(b,4)}, {c if c == '0' else v(c,4)}"

def scale_cvt(g, d):
    g("s_nop 7\ns_nop 3")
    for i in range(16): g(f"v_mul_f32 {v(d+i)}, {NLOG2E:#x}, {v(d+i)}")
    for i in range(8): g(f"v_cvt_pk_bf16_f32 {v(d+i)}, {v(d+2*i)}, {v(d+2*i+1)}")

def scan64(g, regs):
    steps = [f"row_shr:{k} row_mask:0xf bank_mask:0xf bound_ctrl:1" for k in (1, 2, 4, 8)]
    steps += ["row_bcast:15 row_mask:0xa bank_mask:0xf", "row_bcast:31 row_mask:0xc bank_mask:0xf"]
    for st in steps:
        if len(regs) < 3: g(f"s_nop {2-len(regs)}")
        for r in regs: g(f"v_add_u32_dpp v{r}, v{r}, v{r} {st}")

def posrun(g, first, n, areg):
    g(first)
    g(f"s_lshl_b32 s7, s7, 10\nv_lshl_add_u32 v{areg}, {v(LANE)}, 4, s7\ns_add_u32 s7, s7, {PR}")
    for k in range(n):
        if k % 4 == 0:
            g("s_mov_b32 m0, s7" if k == 0 else f"s_add_u32 m0, s7, {k*1024}")
            g("s_nop 0" if k == 0 else f"v_add_u32 v{areg}, 0x1000, v{areg}")
        g(f"buffer_load_dwordx4 v{areg}, {s(rPOS,4)}, 0 offen offset:{(k%4)*1024} lds")

SPINB = 0x400000
def posld(g, first, n):
    r0 = 128 - 4*n
    g(first)
    g(f"s_lshl_b32 s7, s7, 10\nv_lshl_add_u32 v12, {v(LANE)}, 4, s7\nv_add_u32 v16, {PR}, v12")
    for k in range(n):
        if k and k % 4 == 0: g("v_add_u32 v12, 0x1000, v12")
        g(f"buffer_load_dwordx4 v[{r0+4*k}:{r0+4*k+3}], v12, {s(rPOS,4)}, 0 offen offset:{(k%4)*1024}")
def poswr(g, n, younger):
    r0 = 128 - 4*n
    for k in range(n):
        g(f"s_waitcnt vmcnt({n-1-k+younger})\nds_write_b128 v16, v[{r0+4*k}:{r0+4*k+3}] offset:{k*1024}")

def arrive(g, addr, z, one):
    g(f"s_mov_b64 exec, 1\nds_add_u32 v{z}, v{one} offset:{addr}\ns_mov_b64 exec, -1")
def spin(g, addr, n, z, d, lab):
    sl = g.opt.get("spinsleep", 1)
    if lab in g.opt.get("nosleep", ()): sl = 0
    g(f"""
    s_mov_b32 {s(sCNT)}, {SPINB}
    s_branch {lab}e
{lab}:
    {f"s_sleep {sl}" if sl else ""}
    s_sub_u32 {s(sCNT)}, {s(sCNT)}, 1
    s_cbranch_scc1 {lab}d
{lab}e:
    ds_read_b32 v{d}, v{z} offset:{addr}
    s_waitcnt lgkmcnt(0)
    v_readfirstlane_b32 s30, v{d}
    s_cmp_lt_u32 s30, {n}
    s_cbranch_scc1 {lab}
{lab}d:
    """)
WSOFF = 0
EPLOAD = f"WSADD\ns_load_dword {s(sNON)}, {s(pWS,2)}, {WEP}"
EPFIX = f"""s_add_u32 {s(sNON)}, {s(sNON)}, {(341 << 22) + 0x10:#x}
    s_and_b32 {s(sTAG)}, {s(sNON)}, {TAGMASK:#x}"""
ZR, ONE = 44, 43

def phase1(g):
    es = g.es
    late = g.opt.get("late", 2); w1at = g.opt.get("w1at", 1)
    W1 = "\n".join(f"global_load_dwordx4 v[{24+4*k}:{27+4*k}], v47, {s(pWE,2)} offset:{1024*k}" for k in range(4))
    SRCL = f"""global_load_dwordx2 v[46:47], v47, {s(pEA,2)}"""
    THR = g.opt.get("thr", 2560)
    CODEPF = "" if g.opt.get("nocodepf") else f"""s_getpc_b64 s[30:31]
L_pc:
    s_and_b32 s6, s6, 1
    s_lshl_b32 s6, s6, 13
    s_sub_u32 s30, s30, L_pc-{NAME}_kernel
    s_subb_u32 s31, s31, 0
    v_lshl_add_u32 v73, v0, 7, s6
    v_min_u32 v73, L_codeend-{NAME}_kernel-4, v73
    global_load_dword v73, v73, s[30:31]"""
    g(f"""
    s_cmp_ge_u32 s2, 256
    s_cbranch_scc1 L_end
    """)
    g.stamp(0)
    g(f"""
    s_load_dwordx16 s[8:23], s[0:1], 0
    s_load_dwordx4 s[24:27], s[0:1], 64
    s_load_dwordx2 s[28:29], s[0:1], 80
    v_lshrrev_b32 v2, 6, v0
    v_xor_b32 {v(TID)}, {g.opt.get("swap", 8)*64:#x}, v0
    v_readfirstlane_b32 {s(sPW)}, v2
    v_and_b32 v0, 63, v0
    s_and_b32 s5, s2, 7
    s_lshl_b32 s5, s5, 5
    s_lshr_b32 s6, s2, 3
    s_add_u32 {s(sB)}, s5, s6
    s_xor_b32 {s(sWV)}, {s(sPW)}, {g.opt.get("swap", 8)}
    v_mov_b64 v[44:45], 0
    v_mov_b32 v{ONE}, 1
    v_mov_b64 v[18:19], 0
    v_mov_b64 v[46:47], 0
    s_cmp_ge_u32 {s(sWV)}, 8
    s_cbranch_scc1 L_e_gemm
    s_cmp_lg_u32 {s(sWV)}, 7
    s_cbranch_scc1 L_e_bin
    ; ---- early, wave 7
    {CODEPF}
    v_lshlrev_b32 v19, 2, v0
    v_lshrrev_b32 v12, 3, v0
    v_and_b32 v13, 3, v0
    v_and_b32 v14, 4, v0
    v_lshlrev_b32 v14, 2, v14
    v_mov_b32 v23, 0x3f80
    v_lshlrev_b32 v14, v14, v23
    v_cmp_eq_u32 vcc, v12, v13
    s_nop 1
    v_cndmask_b32 v14, 0, v14, vcc
    ds_write_b32 v19, v14
    s_lshr_b32 s5, s2, 3
    s_lshl_b32 s5, s5, 11
    v_and_b32 v15, 15, v0
    v_lshl_add_u32 v15, v15, 7, s5
    s_waitcnt lgkmcnt(0)
    {es(5)}
    s_mov_b64 exec, 0xffff
    global_load_dword v74, v15, {s(pWE,2)}
    s_mov_b64 exec, -1
    s_barrier
    s_branch L_setup
    ; ---- early, binning waves 0..6
L_e_bin:
    v_lshlrev_b32 v16, 3, {v(TID)}
    s_mul_i32 s7, s2, {CH*4}
    ds_write_b64 v16, v[44:45] offset:{HIST}
    v_lshl_add_u32 v19, {v(TID)}, 4, s7
    v_cmp_gt_u32 vcc, {CHT:#x}, {v(TID)}
    s_mov_b32 s6, {E*4}
    v_cmp_gt_u32 {s(sEX2,2)}, s6, v19
    v_lshrrev_b32 v47, 1, v19
    s_waitcnt lgkmcnt(0)
    {es(5)}
    s_and_b64 {s(sEX2,2)}, {s(sEX2,2)}, vcc
    s_mov_b64 exec, {s(sEX2,2)}
    s_cbranch_execz L_b0
    global_load_dwordx4 v[48:51], v19, {s(pDST,2)}
    global_load_dwordx4 v[52:55], v19, {s(pSRC,2)}
    {"" if late else SRCL}
L_b0:
    s_mov_b64 exec, -1
    s_setprio {g.opt.get("bprio", 2)}
    s_barrier
    s_branch L_setup
    ; ---- early, waves 8..15
L_e_gemm:
    s_sub_u32 s30, {s(sWV)}, 8
    s_lshl_b32 s5, s30, 12
    v_lshrrev_b32 v48, 4, v0
    v_and_b32 v49, 15, v0
    s_and_b32 s6, s30, 1
    s_lshl_b32 s7, s6, 5
    s_and_b32 s31, s30, 6
    s_add_u32 s7, s7, s31
    s_lshl_b32 s7, s7, 8
    s_add_u32 s7, s7, {s(sB)}
    s_lshl_b32 s7, s7, 8
    s_lshl_b32 s6, s6, 3
    v_add_u32 v52, s6, v48
    v_xor_b32 v52, v52, v49
    v_lshlrev_b32 v52, 4, v52
    v_lshl_add_u32 v52, v48, 19, v52
    v_add_u32 v18, s7, v52
    v_xor_b32 v19, 64, v18
    v_add_u32 v19, 0x10000, v19
    s_lshl_b32 s31, s30, 11
    s_mov_b32 {s(rH+2)}, {N*256}
    s_mov_b32 {s(rH+3)}, 0x20000
    v_lshlrev_b32 v50, 2, v48
    v_xor_b32 v50, v50, v49
    v_lshlrev_b32 v50, 4, v50
    v_lshl_add_u32 v50, v48, 8, v50
    v_add_u32 v47, s5, v50
    v_add_u32 v50, 0x8000, v47
    v_lshl_add_u32 v45, v0, 4, s5
    s_waitcnt lgkmcnt(0)
    {es(5)}
    s_mov_b64 {s(rH,2)}, {s(pH,2)}
    s_nop 0
    buffer_load_dwordx4 v[96:99], v18, {s(rH,4)}, 0 offen
    buffer_load_dwordx4 v[100:103], v19, {s(rH,4)}, 0 offen
    s_barrier
    global_load_dwordx4 v[104:107], v50, {s(pWE,2)}
    global_load_dwordx4 v[108:111], v50, {s(pWE,2)} offset:1024
    global_load_dwordx4 v[112:115], v50, {s(pWE,2)} offset:2048
    global_load_dwordx4 v[116:119], v50, {s(pWE,2)} offset:3072
L_setup:
    {EPLOAD}
    {es(6)}
    """)
    common_setup(g)
    g(f"""
    {es(7)}
    s_cmp_ge_u32 {s(sWV)}, 8
    s_cbranch_scc1 L_p_gemm
    s_cmp_eq_u32 {s(sWV)}, 7
    s_cbranch_scc1 L_p_misc
    """)
    g(f"""
    v_lshlrev_b32 v14, 4, v0
    v_lshlrev_b32 v15, 2, {v(TID)}
    v_lshlrev_b32 v18, 4, {v(TID)}
    s_lshl_b32 s31, s2, 12
    s_add_u32 s31, s31, {WT}
    s_mov_b32 s5, 0x0c050100
    s_mov_b64 exec, {s(sEX2,2)}
    s_waitcnt vmcnt({1 if late else 2})
    {es(8)}
    """)
    for i in range(4):
        g(f"""
        v_lshlrev_b32_sdwa v{58+i}, 2, v{48+i} dst_sel:DWORD dst_unused:UNUSED_PAD src0_sel:DWORD src1_sel:BYTE_0
        v_lshlrev_b32_sdwa v{62+i}, 2, v{48+i} dst_sel:DWORD dst_unused:UNUSED_PAD src0_sel:DWORD src1_sel:BYTE_1
        ds_add_rtn_u32 v{82+i}, v{58+i}, v{ONE} offset:{HIST}
        v_lshlrev_b32 v{74+i}, v{62+i}, v{ONE}
        """)
    g(f"s_waitcnt vmcnt({0 if late else 1})\ns_movk_i32 s6, {THR}")
    for i in range(4): g(f"v_cmp_gt_u32 s[{8+2*i if i < 2 else 30 if i == 2 else sEX}:{9+2*i if i < 2 else 31 if i == 2 else sEX+1}], s6, v{52+i}".replace("s[30:31]", "vcc"))
    for i in range(4):
        m = ("s[8:9]", "s[10:11]", "vcc", s(sEX, 2))[i]
        g(f"""
        v_cndmask_b32_e64 v{78+i}, 0, 4, {m}
        v_lshl_add_u32 v{90+i}, v{58+i}, 1, v{78+i}
        ds_add_rtn_u32 v{86+i}, v{90+i}, v{74+i} offset:{NIB}
        """)
    arrive(g, S1, ZR, ONE)
    if late: g(f"s_mov_b64 exec, {s(sEX2,2)}\ns_cbranch_execz L_nsl\n{SRCL}\nL_nsl:\ns_mov_b64 exec, -1")
    for i in range(4): g(f"v_perm_b32 v{66+2*i}, v{48+i}, v{52+i}, s5\nv_lshl_or_b32 v{66+2*i}, v{78+i}, 13, v{66+2*i}")
    spin(g, S1, 7, ZR, 90, "L_s1")
    g.stamp(1)
    g(f"""
    ds_read_b128 v[92:95], v14 offset:{HIST}
    ds_read_b32 v99, v15 offset:{HIST}
    ds_read_b64 v[96:97], v16 offset:{NIB}
    {EPFIX}
    s_and_b32 s6, {s(sNON)}, 0xffc00000
    s_and_b32 s7, {s(sNON)}, 0xfff0
    s_andn2_b32 s5, {TMASK:#x}, {s(sNON)}
    v_mov_b32 v103, {s(sNON)}
    """)
    for i in range(4): g(f"v_bfe_u32 v{86+i}, v{86+i}, v{62+i}, 4\nv_or_b32 v{86+i}, s7, v{86+i}")
    g(f"""
    s_waitcnt lgkmcnt(2)
    {g.e2(5)}
    v_add_u32 v104, v92, v93
    v_add3_u32 v104, v104, v94, v95
    v_mov_b32 v105, v104
    """)
    scan64(g, [105])
    g(f"""
    v_sub_u32 v108, v105, v104
    v_add_u32 v109, v108, v92
    v_add_u32 v110, v109, v93
    v_add_u32 v111, v110, v94
    {g.e2(6)}
    ds_write_b128 v14, v[108:111] offset:{PREF}
    ds_read_b32 v106, v15 offset:{PREF}
    s_mov_b64 exec, {s(sEX2,2)}
    """)
    for i in range(4): g(f"ds_read_b32 v{92+i}, v{58+i} offset:{PREF}")
    g(f"""
    s_mov_b64 exec, -1
    s_cmp_ge_u32 {s(sWV)}, 4
    s_cbranch_scc1 L_b2
    s_waitcnt lgkmcnt(6)
    v_lshl_or_b32 v100, v99, 16, s5
    v_mov_b32 v101, v96
    v_mov_b32 v102, v97
    s_waitcnt lgkmcnt(4)
    {g.e2(7)}
    v_or_b32 v100, v100, v106
    buffer_store_dwordx4 v[100:103], v18, {s(rWS,4)}, s31 offen sc1
    s_waitcnt vmcnt(1)
    s_branch L_b3
L_b2:
    s_waitcnt vmcnt(0)
L_b3:
    {es(9)}
    {g.e2(8)}
    s_mov_b64 exec, {s(sEX2,2)}
    s_mov_b32 s31, 0xffff0000
    """)
    for i in range(4):
        g(f"""
        {f"v_lshl_or_b32 v{67+2*i}, v{46+i//2}, 16, v{86+i}" if i % 2 == 0 else f"v_and_or_b32 v{67+2*i}, v{46+i//2}, s31, v{86+i}"}
        v_or_b32 v{66+2*i}, s6, v{66+2*i}
        s_waitcnt lgkmcnt(3)
        v_add_lshl_u32 v{92+i}, v{92+i}, v{82+i}, 3
        ds_write_b64 v{92+i}, v[{66+2*i}:{67+2*i}] offset:{SORT}
        """)
    arrive(g, S2, ZR, ONE)
    g(g.e2(9))
    g(f"""
    v_add_u32 v12, 0xfffff000, v18
    s_mul_i32 s5, s2, 12544
    s_add_u32 s5, s5, {WREC}
    """)
    spin(g, S2, 14, ZR, 90, "L_s2")
    g.stamp(2)
    g(f"""
    s_cmp_lt_u32 {s(sWV)}, 4
    s_cbranch_scc1 L_prep
    """)
    for r in range(5): g(f"ds_read_b128 v[{48+4*r}:{51+4*r}], v12 offset:{SORT+3072*r}")
    for r in range(4):
        g(f"""
        s_waitcnt lgkmcnt({4-r})
        buffer_store_dwordx4 v[{48+4*r}:{51+4*r}], v12, {s(rWS,4)}, s5 offen sc1
        s_add_u32 s5, s5, 3072
        """)
    n47 = g.opt.get("n47", 14); npos = 74 - g.opt.get("n7", 0); n03 = g.opt.get("n03x") or -(-(npos - 4*n47) // 4); wearly = g.opt.get("wearly", 1)
    g(f"""
    s_waitcnt lgkmcnt(0)
    s_cmp_lg_u32 {s(sWV)}, 4
    s_cbranch_scc1 L_p47
    s_mov_b64 exec, 0xffff
    buffer_store_dwordx4 v[64:67], v12, {s(rWS,4)}, s5 offen sc1
    s_mov_b64 exec, -1
    s_branch L_p47
L_p_misc:
    s_lshr_b32 s5, s2, 2
    s_and_b32 s6, s5, 7
    s_and_b32 s7, s2, 3
    v_and_b32 v12, 3, v0
    v_lshlrev_b32 v12, 1, v12
    s_cmp_ge_u32 s6, 4
    s_cbranch_scc1 L_m1
    s_lshl_b32 s7, s7, 3
    v_add_u32 v17, s7, v12
    s_mov_b32 s31, {NLOG2E:#x}
    s_branch L_m2
L_m1:
    s_and_b32 s30, s7, 1
    s_lshl_b32 s30, s30, 4
    s_lshr_b32 s7, s7, 1
    s_lshl_b32 s7, s7, 2
    s_add_u32 s7, s7, s30
    v_and_b32 v17, 4, v12
    v_add3_u32 v17, v17, v12, s7
    s_mov_b32 s31, 1.0
L_m2:
    s_lshl_b32 s6, s6, 13
    s_lshr_b32 s7, s5, 4
    s_lshl_b32 s7, s7, 6
    s_add_u32 s6, s6, s7
    s_and_b32 s7, s5, 8
    s_add_u32 s6, s6, s7
    v_lshrrev_b32 v14, 4, v0
    v_bfe_u32 v16, v0, 2, 2
    v_lshlrev_b32 v16, 1, v16
    v_lshl_add_u32 v16, v14, 4, v16
    v_lshl_add_u32 v16, v17, 8, v16
    v_add_u32 v16, s6, v16
    v_lshl_add_u32 v12, v0, 8, {s(sB)}
    v_mul_u32_u24 v12, 6, v12
    s_lshr_b32 s5, s2, 3
    s_mul_i32 s5, s5, {19*128}
    v_min_u32 v15, 18, v0
    v_lshl_add_u32 v15, v15, 7, s5
    v_lshlrev_b32 v19, 2, v0
    v_lshlrev_b32 v18, 3, v0
    v_add_u32 v17, 0x10000, v18
    """)
    n7 = g.opt.get("n7", 0)
    g(f"""
    buffer_load_dword v24, v15, {s(rPOS,4)}, 0 offen
    global_load_ushort v25, v16, {s(pWH,2)}
    global_load_ushort v26, v16, {s(pWH,2)} offset:256
    global_load_dword v27, v19, {s(pWX,2)}
    global_load_dwordx2 v[28:29], v17, {s(pWE,2)}
    buffer_load_ushort v30, v12, {s(rPOS,4)}, 0 offen
    buffer_load_ushort v31, v12, {s(rPOS,4)}, 0 offen offset:2
    buffer_load_ushort v32, v12, {s(rPOS,4)}, 0 offen offset:4
    """)
    if n7:
        if g.opt.get("w7s"): spin(g, *g.opt["w7s"], ZR, 47, "L_pw8")
        posld(g, f"s_mov_b32 s7, {74-n7}", n7)
    g(f"""
    s_waitcnt vmcnt({n7}) lgkmcnt(0)
    {EPFIX}
    v_lshlrev_b32 v25, 16, v25
    v_lshlrev_b32 v26, 16, v26
    v_mul_f32 v25, s31, v25
    v_mul_f32 v26, s31, v26
    v_cvt_pk_bf16_f32 v25, v25, v26
    s_lshl_b32 s5, s2, 8
    s_add_u32 s5, s5, {WIMG}
    buffer_store_dword v25, v19, {s(rWS,4)}, s5 offen sc1
    v_lshl_or_b32 v30, v31, 16, v30
    v_lshlrev_b32 v31, 16, v32
    ds_write_b32 v19, v27 offset:{WX}
    ds_write_b64 v18, v[30:31] offset:{DT}
    ds_write_b64 v18, v[28:29] offset:{WL}
    {es(8)}
    """)
    if n7:
        spin(g, *g.opt.get("w7w", (S2, 14)), ZR, 47, "L_pw7")
        poswr(g, n7, 1)
    spin(g, S2, 14, ZR, 47, "L_pw")
    g.stamp(2)
    g("L_p47:\ns_setprio 0")
    if g.opt.get("posg2"): spin(g, G1, 16, ZR, 63, "L_pw5")
    posld(g, f"s_sub_u32 s7, {s(sWV)}, 4\ns_mul_i32 s7, s7, {n47}", n47)
    late_setup(g)
    g(f"s_waitcnt vmcnt({n47})")
    g.stamp(3)
    drain_signal(g, "L_ds0")
    if wearly: g("s_waitcnt vmcnt(0)"); poswr(g, n47, 0)
    spin(g, SL, 4, ZR, 48, "L_sl0")
    listload(g)
    if not wearly: poswr(g, n47, 1)
    if g.opt.get("fmode", 1) == 2: g(f"s_cmp_lg_u32 {s(sWV)}, 7\ns_cbranch_scc1 L_p1\ns_setprio 2")
    g(f"""
    s_branch L_p1
L_p_gemm:
    s_setprio {g.opt.get('gprio', 1)}
    {W1 if w1at == 0 else ""}
    s_add_u32 s31, s31, {YR}
    v_lshl_add_u32 v17, v0, 4, s31
    s_and_b32 s5, {s(sWV)}, 1           ; nt
    s_bfe_u32 s6, {s(sWV)}, 0x20001     ; ct
    v_lshrrev_b32 v52, 5, v0            ; h
    v_bfe_u32 v53, v0, 2, 2             ; r'
    v_xor_b32 v54, s6, v53
    v_lshlrev_b32 v54, 6, v54
    v_lshl_add_u32 v54, v53, 8, v54
    v_lshl_add_u32 v54, v52, 11, v54
    v_bfe_u32 v55, v0, 4, 1
    v_lshl_add_u32 v54, v55, 5, v54
    v_and_b32 v55, 3, v0
    v_lshl_add_u32 v12, v55, 3, v54
    v_and_b32 v53, 31, v0
    s_lshl_b32 s7, s5, 13
    v_lshl_add_u32 v54, v53, 8, s7
    v_xor_b32 v55, v52, v49
    v_lshl_add_u32 v14, v55, 4, v54
    s_lshl_b32 s7, s6, 2
    v_lshl_add_u32 v55, v52, 1, s7
    v_xor_b32 v55, v55, v49
    v_lshl_add_u32 v15, v55, 4, v54
    v_add_u32 v15, {YR}, v15
    v_xor_b32 v16, 16, v15
    """)
    g(srd(rBPW, pWS, 12544*256, off=WBP))
    if g.opt.get("cont", 1):
        g(f"""
        s_mul_i32 s7, {s(sB)}, 12544
        v_bfrev_b32 v55, 2
        v_lshrrev_b32 v52, 16, v18
        v_and_b32 v53, 0xff, v18
        v_cmp_gt_u32 vcc, 49, v52
        v_lshl_add_u32 v53, v52, 8, v53
        v_add_u32 v53, s7, v53
        v_cndmask_b32 v18, v55, v53, vcc
        v_cmp_gt_u32 vcc, 48, v52
        v_xor_b32 v53, 64, v53
        v_add_u32 v53, 0x100, v53
        v_cndmask_b32 v19, v55, v53, vcc
        """)
    for st in range(8): g(f"v_xor_b32 v{64+4*st}, {st*32:#x}, v14")
    wo = 4 if w1at == 0 else 0
    g(f"""
    v_add_u32 v46, {(HR-YR) & 0xffffffff:#x}, v17
    s_waitcnt vmcnt({5+wo})
    ds_write_b128 v46, v[96:99]
    s_waitcnt vmcnt({4+wo})
    ds_write_b128 v46, v[100:103] offset:1024
    """)
    for k in range(4): g(f"s_waitcnt vmcnt({3-k+wo})\nds_write_b128 v45, v[{104+4*k}:{107+4*k}] offset:{WR+1024*k}")
    arrive(g, G1, ZR, ONE)
    if w1at == 1: g(W1)
    spin(g, G1, 8, ZR, 46, "L_g1")
    if w1at == 2: g(W1)
    g.stamp(1)
    for st in range(8):
        g(f"ds_read_b128 {v(64+4*st,4)}, v{64+4*st} offset:{HR}")
        for u in range(2): g(f"ds_read_b64_tr_b16 {v(96+4*st+2*u,2)}, v12 offset:{WR+st*4096+u*1024}")
        if st >= 4:
            k = st - 4
            g("s_waitcnt lgkmcnt(12)")
            g(mf32(48, 96+4*k, 64+4*k, '0' if k == 0 else 48))
            if k == 0: g(g.e2(5))
    for k in range(4, 8):
        g(f"s_waitcnt lgkmcnt({3*(7-k)})")
        g(mf32(48, 96+4*k, 64+4*k, 48))
    g(g.e2(6))
    g(EPFIX)
    scale_cvt(g, 48)
    g(g.e2(7))
    g(f"""
    ds_write_b128 v15, v[48:51]
    ds_write_b128 v16, v[52:55]
    {es(8)}
    {g.e2(8)}
    """)
    arrive(g, G1, ZR, ONE); spin(g, G1, 16, ZR, 46, "L_g2")
    g.stamp(2)
    g(f"""
    ds_read_b128 v[56:59], v17
    ds_read_b128 v[60:63], v17 offset:1024
    s_waitcnt lgkmcnt(1)
    buffer_store_dwordx4 v[56:59], v18, {s(rBPW,4)}, 0 offen sc1
    s_waitcnt lgkmcnt(0)
    buffer_store_dwordx4 v[60:63], v19, {s(rBPW,4)}, 0 offen sc1
    s_setprio 0
    s_waitcnt vmcnt(2)
    """)
    for k in range(4): g(f"ds_write_b128 v45, v[{24+4*k}:{27+4*k}] offset:{WR+1024*k}")
    arrive(g, G1, ZR, ONE); spin(g, G1, 24, ZR, 46, "L_g3")
    g(g.e2(9))
    for st in range(8):
        if st == 7: g("s_waitcnt lgkmcnt(10)")
        for u in range(2): g(f"ds_read_b64_tr_b16 {v(96+4*st+2*u,2)}, v12 offset:{WR+st*4096+u*1024}")
    for st in range(8):
        g(f"s_waitcnt lgkmcnt({min(12, 14-2*st)})")
        g(mf32(48, 64+4*st, 96+4*st, '0' if st == 0 else 48))
    if g.opt.get("dsig", 1):
        g("s_waitcnt vmcnt(0)")
        g.stamp(3)
        drain_signal(g, "L_ds1", 64)
    scale_cvt(g, 48)
    g(f"""
    ds_write_b128 v17, v[48:51]
    ds_write_b128 v17, v[52:55] offset:1024
    {es(9)}
    """)
    late_setup(g)
    if not g.opt.get("dsig", 1):
        g("s_waitcnt vmcnt(0)")
        g.stamp(3)
        drain_signal(g, "L_ds1")
    epf = g.opt.get("epf")
    if epf:
        g(f"""
        s_cmp_lt_u32 {s(sWV)}, 8
        s_cbranch_scc1 L_nepf
        s_lshr_b32 s5, s2, 3
        s_lshr_b32 s6, s5, 1
        s_sub_u32 s7, {s(sWV)}, 8
        s_lshl_b32 s7, s7, 5
        s_add_u32 s6, s6, s7
        s_add_u32 s6, s6, {16*256}
        s_and_b32 s5, s5, 1
        s_lshl_b32 s5, s5, 7
        v_and_b32 v56, 31, {v(LANE)}
        v_lshl_add_u32 v56, v56, 8, s6
        v_lshrrev_b32 v57, 5, {v(LANE)}
        v_lshl_add_u32 v56, v57, 4, v56
        """)
        lo = 0
        for (n, pre) in epf:
            m = ((1 << n) - 1) << lo; lo += n
            g(f"""
            {pre}
            s_mov_b32 exec_lo, {m:#x}
            s_mov_b32 exec_hi, {m:#x}
            buffer_load_dword v93, v56, {s(rBPG,4)}, s5 idxen offset:{3*USTR} sc1
            """)
        g("s_mov_b64 exec, -1\nL_nepf:")
    spin(g, SL, 4, ZR, 48, "L_sl")
    listload(g)
    g(f"""
    s_branch L_p1
L_prep:
    """)
    if g.opt.get("posg2"): spin(g, G1, 16, ZR, 90, "L_pw4")
    posld(g, f"s_mul_i32 s7, {s(sWV)}, {n03}\ns_add_u32 s7, s7, {4*n47}\ns_min_u32 s7, s7, {npos-n03}", n03)
    if g.opt.get("w03", 1): poswr(g, n03, 0)
    if g.opt.get("ttrig"): spin(g, *g.opt["ttrig"], ZR, 63, "L_tt")
    g(f"""
    s_lshl_b32 s5, {s(sB)}, 4
    s_add_u32 s5, s5, {WT}
    v_lshl_add_u32 v62, {v(TID)}, 12, s5
    s_andn2_b32 s6, {TMASK:#x}, {s(sNON)}
    s_mov_b32 {s(sCNT)}, 0x100000
    s_movk_i32 s5, 784
    v_mul_u32_u24 v79, s5, {v(TID)}
    v_lshl_or_b32 v79, {v(TID)}, 20, v79
    s_mov_b32 s8, 0x05010400
    s_mov_b32 s9, 0x07030602
    s_mov_b32 s10, 0x05040100
    s_mov_b32 s11, 0x07060302
    {g.opt.get("prepoll", "s_waitcnt vmcnt(0)")}
    buffer_load_dwordx4 v[68:71], v62, {s(rWS,4)}, 0 offen sc1
    """)
    late_setup(g)
    g(f"""
L_poll:
    s_sub_u32 {s(sCNT)}, {s(sCNT)}, 1
    s_waitcnt vmcnt(0)
    v_and_b32 v72, {TMASK:#x}, v68
    v_cmp_ne_u32 vcc, {s(sNON)}, v71
    v_cmp_ne_u32 {s(sEX,2)}, s6, v72
    s_cbranch_scc1 L_polled
    s_or_b64 exec, vcc, {s(sEX,2)}
    s_cbranch_execz L_polled
    buffer_load_dwordx4 v[68:71], v62, {s(rWS,4)}, 0 offen sc1
    s_branch L_poll
L_polled:
    s_mov_b64 exec, -1
    """)
    g.stamp(3)
    steps = [f"row_shr:{k} row_mask:0xf bank_mask:0xf bound_ctrl:1" for k in (1, 2, 4, 8)]
    steps += ["row_bcast:15 row_mask:0xa bank_mask:0xf", "row_bcast:31 row_mask:0xc bank_mask:0xf"]
    sc = lambda r, k: f"v_add_u32_dpp v{r}, v{r}, v{r} {steps[k]}"
    g(f"""
    v_bfe_u32 v91, v68, 16, 11             ; count
    v_and_b32 v85, 0x7ff, v68              ; start
    v_min_u32 v92, 24, v91
    v_add3_u32 v77, v85, v92, 1
    v_lshrrev_b32 v78, 1, v85
    v_lshrrev_b32 v76, 1, v77
    v_sub_u32 v76, v76, v78                ; granules
    v_lshl_or_b32 v84, v92, 16, v76
    v_and_b32 v54, 0x0f0f0f0f, v69
    v_lshrrev_b32 v55, 4, v69
    {sc(84,0)}
    v_and_b32 v56, 0x0f0f0f0f, v70
    v_lshrrev_b32 v57, 4, v70
    {sc(84,1)}
    v_and_b32 v55, 0x0f0f0f0f, v55
    v_and_b32 v57, 0x0f0f0f0f, v57
    {sc(84,2)}
    v_perm_b32 v58, v56, v54, s8
    v_perm_b32 v59, v56, v54, s9
    {sc(84,3)}
    v_perm_b32 v60, v57, v55, s8
    v_perm_b32 v61, v57, v55, s9
    {sc(84,4)}
    v_perm_b32 v72, v60, v58, s10
    v_perm_b32 v73, v60, v58, s11
    {sc(84,5)}
    s_mov_b32 exec_lo, 0
    s_brev_b32 exec_hi, 1
    ds_add_rtn_u32 v90, v{ZR}, v84 offset:{NGC}
    s_mov_b64 exec, -1
    v_perm_b32 v74, v61, v59, s10
    v_perm_b32 v75, v61, v59, s11
    v_mov_b64 v[80:81], v[72:73]
    v_mov_b64 v[82:83], v[74:75]
    v_add_u32 v78, v78, v79                ; list entry
    """)
    scan64(g, [80, 81, 82, 83])
    g(f"""
    s_mov_b32 exec_lo, 0
    s_brev_b32 exec_hi, 1
    ds_add_rtn_u64 v[86:87], v{ZR}, v[80:81] offset:{GC2}
    ds_add_rtn_u64 v[88:89], v{ZR}, v[82:83] offset:{GC2+8}
    s_mov_b64 exec, -1
    s_waitcnt lgkmcnt(2)
    v_readlane_b32 s31, v90, 63
    v_lshlrev_b32 v93, 30, v85
    v_not_b32 v77, v77
    v_add_u32 v84, s31, v84
    v_and_b32 v93, 0x40000000, v93         ; first half not mine
    v_and_b32 v84, 0xffff, v84
    v_lshlrev_b32 v77, 31, v77             ; last half not mine
    v_cmp_ge_u32 vcc, 0x400, v84
    v_sub_u32 v94, v84, v76
    v_lshlrev_b32 v94, 2, v94
    v_lshlrev_b32 v84, 2, v84
    v_or_b32 v93, v93, v78
    s_mov_b64 exec, vcc
    """)
    for i in range(13):
        g(f"""
        v_cmpx_lt_u32 {s(sEX,2) if i == 0 else "vcc"}, {i}, v76
        {"" if i == 0 else "v_add_u32 v78, 1, v78"}
        {"s_cbranch_execz L_listed" if i >= 6 else ""}
        ds_write_b32 v94, v{93 if i == 0 else 78} offset:{LIST+4*i}
        """)
    g(f"""
L_listed:
    s_mov_b64 exec, {s(sEX,2)}
    ds_or_b32 v84, v77 offset:{LIST-4}
    s_mov_b64 exec, -1
    v_add3_u32 v70, v54, v55, v56
    v_add_u32 v70, v70, v57
    v_sad_u8 v70, v70, 0, 0
    v_cmp_ne_u32 vcc, v70, v91
    v_cmp_lt_u32 {s(sEX,2)}, 24, v91
    s_or_b64 exec, vcc, {s(sEX,2)}
    ds_write_b32 v{ZR}, v{ONE} offset:{ESC}
    """)
    arrive(g, SL, ZR, ONE)
    g(f"""
    v_sub_u32 v80, v80, v72
    v_sub_u32 v81, v81, v73
    v_sub_u32 v82, v82, v74
    v_sub_u32 v83, v83, v75
    """)
    spin(g, SL, 4, ZR, 48, "L_sl2")
    listload(g)
    g(f"""
    v_readlane_b32 s5, v86, 63
    v_readlane_b32 s6, v87, 63
    v_readlane_b32 s7, v88, 63
    v_readlane_b32 s30, v89, 63
    s_setprio 0
    v_add_u32 v80, s5, v80
    v_add_u32 v81, s6, v81
    v_add_u32 v82, s7, v82
    v_add_u32 v83, s30, v83
    ds_write_b128 v18, v[80:83] offset:{BASE}
    """)
    if not g.opt.get("w03", 1): poswr(g, n03, 1)
    g("L_p1:")

def listload(g):
    g.stamp(4)
    g(f"""
    ds_read_b32 v48, v14 offset:{LIST}
    ds_read_b64 v[50:51], v{ZR} offset:{NGC}
    ds_read_u16 v52, v22 offset:{GC2}
    v_bfrev_b32 v53, 2
    s_waitcnt lgkmcnt(1)
    v_cmp_lt_u32_sdwa {s(sEX2,2)}, {v(T2)}, v50 src0_sel:DWORD src1_sel:WORD_0
    v_and_b32 v49, 0x3ffff, v48
    v_lshlrev_b32 v49, 4, v49
    v_cndmask_b32 v49, v53, v49, {s(sEX2,2)}
    buffer_load_dwordx4 v[64:67], v49, {s(rWS,4)}, {s(sK1)} offen sc1
    s_waitcnt lgkmcnt(0)
    """)

def drain_signal(g, lab, r=56):
    g(f"""
    v_lshlrev_b32 v{r}, 10, {v(LANE)}
    v_mov_b32 v{r+1}, {s(sNON)}
    s_mov_b64 exec, 1
    ds_add_rtn_u32 v{r+2}, v{ZR}, v{ONE} offset:{DRC}
    s_lshl_b32 s5, s2, 2
    s_add_u32 s5, s5, {WF}
    s_waitcnt lgkmcnt(0)
    v_readfirstlane_b32 s6, v{r+2}
    s_cmp_lg_u32 s6, 11
    s_cbranch_scc1 {lab}
    s_mov_b64 exec, 0xff
    buffer_store_dword v{r+1}, v{r}, {s(rWS,4)}, s5 offen sc1
{lab}:
    s_mov_b64 exec, -1
    """)

def fpoll7(g, skip):
    cf = True
    g(f"""
    s_cmp_lg_u32 {s(sWV)}, 7
    s_cbranch_scc1 {skip}
    s_setprio 3
    v_lshlrev_b32 v72, {4 if cf else 7}, {v(LANE)}
    s_mov_b32 {s(sCNT)}, 0x100000
    """)
    if cf:
        g(f"""
        s_and_b32 s14, s2, 7
        s_lshl_b32 s14, s14, 10
        s_add_u32 s14, s14, {WF}
L_fp:
        buffer_load_dwordx4 v[68:71], v72, {s(rWS,4)}, s14 offen sc1
        """)
    else:
        g(f"""
        s_mov_b32 s14, {WF}
        s_mov_b32 s15, {WF+8192}
        s_mov_b32 s16, {WF+16384}
        s_mov_b32 s17, {WF+24576}
L_fp:
        buffer_load_dword v68, v72, {s(rWS,4)}, s14 offen sc1
        buffer_load_dword v69, v72, {s(rWS,4)}, s15 offen sc1
        buffer_load_dword v70, v72, {s(rWS,4)}, s16 offen sc1
        buffer_load_dword v71, v72, {s(rWS,4)}, s17 offen sc1
        """)
    g(f"""
    s_sub_u32 {s(sCNT)}, {s(sCNT)}, 1
    s_waitcnt vmcnt(0)
    s_cbranch_scc1 L_fpd
    v_xor_b32 v68, {s(sNON)}, v68
    v_xor_b32 v69, {s(sNON)}, v69
    v_xor_b32 v70, {s(sNON)}, v70
    v_xor_b32 v71, {s(sNON)}, v71
    v_or3_b32 v68, v68, v69, v70
    v_or_b32 v68, v68, v71
    v_cmp_ne_u32 vcc, 0, v68
    s_and_b64 exec, exec, vcc
    s_cbranch_execz L_fpd
    {g.opt.get("fsleep", "")}
    s_branch L_fp
L_fpd:
    s_mov_b64 exec, -1
    """)

def late_setup(g):
    g(f"""
    v_mov_b32 {v(Y0+1)}, 0
    v_mov_b64 {v(Y0+2,2)}, 0
    v_mov_b32 {v(Y1+1)}, 0
    v_mov_b64 {v(Y1+2,2)}, 0
    ; selectors
    v_bfe_u32 v58, {v(LANE)}, 3, 1
    v_and_b32 v59, 3, {v(LANE)}
    v_lshl_add_u32 v58, v58, 2, v59
    v_lshlrev_b32 v58, 4, v58
    v_lshrrev_b32 v60, 1, {v(LANE)}
    v_xor_b32 v60, v60, {v(LANE)}
    v_and_b32 v60, 16, v60
    v_lshl_or_b32 v58, v60, 20, v58
    v_and_b32 v60, 4, {v(LANE)}
    v_lshl_or_b32 v58, v60, 20, v58
    v_xor_b32 v60, 0x400000, v58
    ds_read_b128 {v(SEL0,4)}, v58
    ds_read_b128 {v(SEL1,4)}, v60
    v_mov_b32 {v(DP+7)}, {v(DP+1)}
    v_add_u32 {v(DP+5)}, {USTR:#x}, {v(DP+1)}
    v_add_u32 {v(DP+3)}, {2*USTR:#x}, {v(DP+1)}
    v_add_u32 {v(DP+1)}, {3*USTR:#x}, {v(DP+1)}
    v_mov_b32 v45, 0x3fff
    v_mov_b64 v[46:47], 0
    v_lshlrev_b32 v14, 2, {v(T2)}
    """)

def group_addr(g):
    g(f"""
    s_mul_i32 s6, {s(sG)}, {CAP*16}
    s_add_u32 s6, s6, {RA}
    v_lshrrev_b32 v56, 5, {v(LANE)}
    v_and_b32 v57, 31, {v(LANE)}
    v_lshl_add_u32 {v(AWX)}, v57, 4, s6
    v_bfe_u32 v58, {v(LANE)}, 2, 2
    v_lshl_add_u32 v58, v56, 2, v58
    v_lshl_add_u32 {v(AWS)}, v58, 4, s6
    v_lshrrev_b32 v58, 3, {v(LANE)}
    v_lshl_add_u32 {v(AIDX)}, v58, 4, s6
    """)

def common_setup(g):
    g(srd(rWS, pWS, 0x1000000)); g(srd(rPOS, pPOS, N*6))
    g(srd(rBPG, pWS, 12544, off=WBP-3*USTR, stride=256))
    g(srd(rOUT, pOUT, N*256)); g(srd(rOUTP, pOUT, N*6, off=N*256))
    g(f"""
    s_and_b32 s5, {s(sWV)}, 7
    s_cmp_eq_u32 s5, 7
    s_cselect_b32 s5, 0x200, 0
    v_xor_b32 {v(T2)}, s5, {v(TID)}
    s_and_b32 {s(sHALF)}, {s(sPW)}, 1
    s_lshr_b32 {s(sSLOT)}, {s(sPW)}, 2
    s_lshr_b32 {s(sG)}, {s(sPW)}, 1
    s_mul_i32 {s(sSTG)}, {s(sPW)}, {STGS}
    s_add_u32 {s(sSTG)}, {s(sSTG)}, {PR}
    s_mov_b32 {s(sK1)}, {WREC}
    s_mov_b32 {s(sMORE)}, 0
    s_mov_b32 {s(sRND)}, 0
    """)
    group_addr(g)
    g(f"""
    s_lshl_b32 s5, {s(sHALF)}, 7
    v_lshl_add_u32 v41, v57, 1, s5
    v_and_b32 v59, 3, {v(LANE)}
    ; loop constants
    v_lshrrev_b32 v60, 4, {v(LANE)}
    v_and_b32 v61, 7, {v(LANE)}
    v_xor_b32 v60, v60, v61
    v_lshl_add_u32 {v(DP+1)}, v60, 4, s5
    v_lshrrev_b32 v23, 3, {v(LANE)}
    v_lshrrev_b32 v60, 1, v61
    v_lshlrev_b32 v20, 1, v23
    v_lshrrev_b32 v20, v60, v20
    v_xor_b32 v20, v20, v61
    v_bfe_i32 v20, v20, 0, 1
    v_lshlrev_b32 v22, 1, v61
    v_lshrrev_b32 v62, 3, v57
    v_mul_u32_u24 v62, {USTR:#x}, v62
    v_lshl_add_u32 v62, v61, 7, v62
    v_xor_b32 v60, v60, v56
    v_lshlrev_b32 v60, 4, v60
    v_add3_u32 {v(FA0)}, v62, v60, {s(sSTG)}
    v_xor_b32 v60, 32, v60
    v_add3_u32 {v(FA1)}, v62, v60, {s(sSTG)}
    s_lshl_b32 s5, {s(sG)}, 9
    s_lshl_b32 s7, {s(sHALF)}, 13
    s_add_u32 s5, s5, s7
    v_lshl_add_u32 {v(XA)}, v57, 4, s5
    v_bfe_u32 v57, {v(LANE)}, 2, 3
    s_and_b32 s5, {s(sG)}, 1
    s_lshl_b32 s5, s5, 3
    v_add_u32 v58, s5, v57
    s_lshl_b32 s6, {s(sHALF)}, 3
    v_lshl_add_u32 v60, v56, 1, s6
    v_xor_b32 v60, v60, v58
    v_lshlrev_b32 v60, 4, v60
    v_lshl_add_u32 {v(EA0)}, v58, 8, v60
    v_lshl_add_u32 v57, v57, 3, {s(sG)}
    v_lshl_add_u32 v57, v57, 8, {s(sB)}
    v_lshl_add_u32 v59, v59, 1, -2
    v_mad_u32_u24 {v(EA1)}, v57, 6, v59
    ; F address v42, list address v43, pad record v44..47
    v_and_b32 v42, 15, {v(LANE)}
    s_lshl_b32 s5, {s(sWV)}, {6 if True else 11}
    s_add_u32 s5, s5, {WF}
    v_lshl_add_u32 v42, v42, {2 if True else 7}, s5
    """)

def geo_issue(g, w0, t, basel=None):
    g(f"""
    v_and_b32 v{t+7}, 0x3fff, v{w0}
    v_mad_u32_u24 v{t+8}, v{t+7}, 6, s31
    v_bfe_u32 v{t+9}, v{w0}, 16, 6
    ds_read_u16_d16_hi v{t}, v{t+8}
    ds_read_u16_d16_hi v{t+1}, v{t+8} offset:2
    ds_read_u16_d16_hi v{t+2}, v{t+8} offset:4
    v_lshlrev_b32 v{t+8}, 3, v{t+9}
    ds_read_b64 v[{t+4}:{t+5}], v{t+8} offset:{DT}
    """)
    if basel is not None:
        g(f"""
        v_bfe_u32 v{t+8}, v{w0}, 15, 4
        v_add_u32 v{t+8}, v{t+8}, v{basel}
        ds_read_u8 v{t+3}, v{t+8} offset:{BASE}
        """)

def geo_pre(g, w0, t, o):
    CONT = f"""v_and_b32 v{o+1}, 0xff, v{w0}
    v_lshrrev_b32 v{t+7}, 8, v{t+7}
    v_mad_u32_u24 v{t+7}, v{o+1}, 49, v{t+7}""" if g.opt.get("cont", 1) else ""
    g(f"""
    v_lshrrev_b32 v{t+9}, 3, v{t+9}
    v_and_b32 v{t+6}, 0xffff0000, v{w0+1}
    {CONT}
    v_lshl_or_b32 v{o+1}, v{t+9}, 20, v{t+7}
    v_mul_f32 v{t+6}, {NLOG2E:#x}, v{t+6}
    """)
def geo_math(g, w0, t, o):
    g(f"""
    v_lshlrev_b32 v{t+7}, 16, v{t+4}
    v_and_b32 v{t+4}, 0xffff0000, v{t+4}
    v_sub_f32 v{t+2}, v{t+5}, v{t+2}
    v_sub_f32 v{t}, v{t+7}, v{t}
    v_sub_f32 v{t+1}, v{t+4}, v{t+1}
    v_mul_f32 v{t+4}, v{t+2}, v{t+2}
    v_fmac_f32 v{t+4}, v{t}, v{t}
    v_cvt_pk_bf16_f32 v{o+2}, 1.0, v{t}
    v_fmac_f32 v{t+4}, v{t+1}, v{t+1}
    v_cvt_pk_bf16_f32 v{o+3}, v{t+1}, v{t+2}
    v_mul_f32 v{t+4}, {NLOG2E:#x}, v{t+4}
    v_cvt_pk_bf16_f32 v{o}, v{t+4}, v{t+6}
    """)

def fpoll_loop(g, r, d, lab, pre=""):
    g(f"""
    s_mov_b32 {s(sCNT)}, 0x100000
    {pre}
{lab}:
    s_waitcnt vmcnt(0)
{lab}c:
    v_cmp_ne_u32 vcc, {s(sNON)}, v{d}
    s_sub_u32 {s(sCNT)}, {s(sCNT)}, 1
    s_cbranch_scc1 {lab}d
    s_and_b64 exec, exec, vcc
    s_cbranch_execz {lab}d
    buffer_load_dword v{d}, v{r}, {s(rWS,4)}, 0 offen sc1
    s_branch {lab}
{lab}d:
    s_mov_b64 exec, -1
    """)

def pads(g, send):
    g(f"""
    s_add_u32 {s(sNT)}, {s(sN)}, 31
    s_lshr_b32 {s(sNT)}, {s(sNT)}, 5
    s_lshl_b32 s7, {s(sNT)}, 5
    s_sub_u32 s7, s7, {s(sN)}
    s_mul_i32 s6, {s(sG)}, {CAP}
    s_add_u32 s6, s6, {send}
    s_add_u32 s6, s6, {RA//16}
    v_add_lshl_u32 v59, {v(LANE)}, s6, 4
    s_bfm_b64 exec, s7, 0
    ds_write_b128 v59, v[44:47]
    s_mov_b64 exec, -1
    """)

def ypick(g):
    g(f"""
    v_add_u32 {v(XA)}, {YR}, {v(XA)}
    s_lshl_b32 s6, {s(sSLOT)}, 12
    s_add_u32 s6, s6, {YR}
    v_add_u32 {v(EA0)}, s6, {v(EA0)}
    v_mov_b64 v[20:21], 0
    s_mov_b32 exec_lo, 0
    ds_read_b128 {v(Y0,4)}, {v(XA)}
    ds_read_b128 {v(Y1,4)}, {v(XA)} offset:4096
    s_not_b64 exec, exec
    ds_read_u16 {v(Y0)}, v41 offset:{WL}
    ds_read_u16 v20, v41 offset:{WL+256}
    ds_read_u16 {v(Y1)}, v41 offset:{WL+64}
    ds_read_u16 v21, v41 offset:{WL+320}
    s_mov_b64 exec, -1
    """)
def ymerge(g):
    g(f"""
    v_lshl_or_b32 {v(Y0)}, v20, 16, {v(Y0)}
    v_lshl_or_b32 {v(Y1)}, v21, 16, {v(Y1)}
    """)

def phase2(g):
    PFI = f"s_mul_i32 s6, s6, 49\nv_add_u32 v92, s6, {v(LANE)}" if g.opt.get("cont", 1) else f"v_lshl_add_u32 v92, {v(LANE)}, 8, s6"
    PIV = g.opt.get("piv", 88); bar0 = g.opt.get("bar0", 0)
    if bar0: g("s_waitcnt lgkmcnt(0)\ns_barrier")
    g(f"""
    s_mov_b32 s31, {PR}
    s_mov_b32 s8, 0xffc00000
    v_lshrrev_b32 v21, 8, v52              ; hot
    v_and_b32 v52, 0xff, v52
    v_add_u32 v52, v52, v21                ; n
    v_xor_b32 v53, v52, v20
    v_sub_u32 v53, v53, v20
    v_lshl_add_u32 v53, v52, 16, v53
    v_add_u32 v56, 31, v52
    v_and_b32 v56, 0xffffffe0, v56
    v_add_u32_dpp v53, v53, v53 quad_perm:[1,0,3,2] row_mask:0xf bank_mask:0xf
    v_sub_u32 v56, v56, v21
    v_cmp_lt_u32 vcc, {CAP-PIV:#x}, v56
    v_add_u32_dpp v53, v53, v53 quad_perm:[2,3,0,1] row_mask:0xf bank_mask:0xf
    s_movk_i32 s5, {PIV}
    v_cmp_lt_u32 {s(sEX,2)}, s5, v21
    v_add_u32_dpp v53, v53, v53 row_half_mirror row_mask:0xf bank_mask:0xf
    v_readfirstlane_b32 s5, v50
    v_readfirstlane_b32 s6, v51
    v_bfe_i32 v57, v53, 0, 16
    v_sub_u32 v53, v53, v57
    v_sub_u32 v56, 0, v57
    v_readfirstlane_b32 s7, v53
    v_max_i32 v57, v57, v56
    v_lshl_or_b32 v53, v57, 3, v23
    s_or_b64 vcc, vcc, {s(sEX,2)}
    s_cselect_b32 s6, 1, s6
    v_min_u32_dpp v53, v53, v53 row_ror:8 row_mask:0xf bank_mask:0xf
    s_xor_b32 s5, s5, s7
    s_cmp_gt_u32 s5, 0x400
    s_cselect_b32 s6, 1, s6
    s_cmp_lg_u32 s6, 0
    s_cbranch_scc1 L_slow
    {"s_branch L_slow" if g.opt.get("forceslow") else ""}
    v_readlane_b32 s5, v53, 0
    v_readlane_b32 s6, v53, 16
    v_readlane_b32 s7, v53, 32
    v_readlane_b32 s30, v53, 48
    v_bfe_u32 v54, v48, 20, 8
    v_lshlrev_b32 v55, 1, v48
    v_lshlrev_b32 v54, 4, v54
    v_cmp_le_i32 vcc, 0, v55
    v_cmp_le_i32 {s(sEX,2)}, 0, v48
    s_min_u32 s5, s5, s6
    s_min_u32 s7, s7, s30
    s_min_u32 s5, s5, s7
    s_and_b64 s[10:11], vcc, {s(sEX2,2)}
    s_and_b64 s[12:13], {s(sEX,2)}, {s(sEX2,2)}
    s_lshl_b32 s5, s5, 1
    s_lshr_b32 s5, s5, {s(sSLOT)}
    s_movk_i32 s6, {PIV}
    s_and_b32 s5, s5, {0 if g.opt.get("noflip") else 1}
    s_cbranch_scc0 L_nf
    s_bitcmp1_b32 {s(sG)}, 0
    s_movk_i32 s6, {PIV+CAP}
    s_cselect_b32 s6, {(PIV-CAP) & 0xffffffff:#x}, s6
    s_movk_i32 s7, 1536
    s_cselect_b32 s7, {(-1536) & 0xffffffff:#x}, s7
    s_xor_b32 {s(sG)}, {s(sG)}, 1
    v_xor_b32 {v(XA)}, 0x200, {v(XA)}
    v_xor_b32 {v(EA0)}, 0x880, {v(EA0)}
    v_add_u32 {v(EA1)}, s7, {v(EA1)}
L_nf:
    v_readlane_b32 s7, v21, {s(sG)}
    v_readlane_b32 {s(sN)}, v52, {s(sG)}
    s_sub_u32 s6, s6, s7
    s_lshl_b32 s6, s6, 4
    s_sub_u32 s14, {s(sN)}, s7
    s_add_u32 s14, s14, {PIV}
    v_add_u32 {v(AWX)}, s6, {v(AWX)}
    v_add_u32 {v(AWS)}, s6, {v(AWS)}
    v_add_u32 {v(AIDX)}, s6, {v(AIDX)}
    """)
    if not bar0: g("s_waitcnt lgkmcnt(0)\ns_barrier")
    if g.opt.get("fearly"): fpoll7(g, "L_nfp"); g("L_nfp:")
    ypick(g)
    pads(g, "s14")
    g(f"v_mov_b32 v55, {RA//16+PIV}\ns_movk_i32 s9, {CAP}")
    g(f"""
    s_mov_b32 {s(sCNT)}, 0x100000
    s_mov_b64 exec, {s(sEX2,2)}
L_rp:
    s_waitcnt vmcnt(0)
    v_bfi_b32 v56, s8, v64, v65
    v_bfi_b32 v57, s8, v66, v67
    v_and_b32 v56, {TAGMASK:#x}, v56
    v_and_b32 v57, {TAGMASK:#x}, v57
    v_cmp_ne_u32 vcc, {s(sTAG)}, v56
    v_cmp_ne_u32 {s(sEX,2)}, {s(sTAG)}, v57
    s_sub_u32 {s(sCNT)}, {s(sCNT)}, 1
    s_cbranch_scc1 L_rpd
    s_or_b64 exec, vcc, {s(sEX,2)}
    s_cbranch_execz L_rpd
    buffer_load_dwordx4 v[64:67], v49, {s(rWS,4)}, {s(sK1)} offen sc1
    s_branch L_rp
L_rpd:
    s_mov_b64 exec, -1
    """)
    g.stamp(5)
    if g.opt.get("fmode", 1) in (1, 2): fpoll7(g, "L_nfp"); g("L_nfp:")
    bl = g.opt.get("blind", 10)
    if bl:
        g(f"""
        s_lshr_b32 s5, s2, 3
        s_lshr_b32 s6, s5, 1
        s_lshl_b32 s7, {s(sWV)}, 4
        s_add_u32 s6, s6, s7
        s_and_b32 s5, s5, 1
        s_lshl_b32 s5, s5, 7
        {PFI}
        s_bfm_b64 exec, {bl}, 0
        buffer_load_dword v92, v92, {s(rBPG,4)}, s5 idxen offset:{3*USTR} sc1
        s_mov_b64 exec, -1
        """)
    g(f"""
    s_cmp_eq_u64 {s(sEX2,2)}, 0
    s_cbranch_scc1 L_gd
    s_mov_b64 exec, s[10:11]
    """)
    geo_issue(g, 64, 68, 54)
    g("s_mov_b64 exec, s[12:13]")
    geo_issue(g, 66, 80, 54)
    for k, (w0, t, o, ex, wt) in enumerate(((64, 68, 56, "s[10:11]", 5), (66, 80, 60, "s[12:13]", 1))):
        g(f"""
        s_mov_b64 exec, {ex}
        v_and_b32 v{t+8}, 15, v{w0+1}
        v_and_b32 v{t+10}, 7, v{t+9}
        v_bfe_i32 v{t+11}, v{w0}, 15, 1
        v_mad_u32_u24 v{t+10}, v{t+10}, s9, v55
        """)
        geo_pre(g, w0, t, o)
        g(f"s_waitcnt lgkmcnt({wt})")
        geo_math(g, w0, t, o)
        g(f"""
        v_add_u32 v{t+3}, v{t+3}, v{t+8}
        v_xad_u32 v{t+3}, v{t+3}, v{t+11}, v{t+10}
        v_lshlrev_b32 v{t+3}, 4, v{t+3}
        ds_write_b128 v{t+3}, v[{o}:{o+3}]
        """)
    g("s_mov_b64 exec, -1\nL_gd:")
    g.stamp(6)
    g("s_waitcnt lgkmcnt(0)")
    ymerge(g)
    if not g.opt.get("fearly") and not g.opt.get("fmode", 1): fpoll7(g, "L_go")
    g(f"""
L_go:
    s_waitcnt lgkmcnt(0)
    s_barrier
    """)
    if g.opt.get("warm"):
        g(f"""
        s_lshr_b32 s5, s2, 3
        s_lshr_b32 s6, s5, 1
        s_lshl_b32 s7, {s(sWV)}, 4
        s_add_u32 s6, s6, s7
        s_and_b32 s5, s5, 1
        s_lshl_b32 s5, s5, 7
        {PFI}
        buffer_load_dword v92, v92, {s(rBPG,4)}, s5 idxen offset:{3*USTR} sc1
        s_waitcnt vmcnt(0)
        s_sleep 64
        s_barrier
        """)
    g.stamp(7)

def slowpath(g):
    g(f"""
L_slow:
    """)
    if not g.opt.get("bar0", 0): g("s_waitcnt lgkmcnt(0)\ns_barrier")
    ypick(g)
    g("s_waitcnt lgkmcnt(0)")
    ymerge(g)
    g(f"v_lshrrev_b32 v40, 2, {v(TID)}")
    g(f"buffer_load_dword v43, v42, {s(rWS,4)}, 0 offen sc1")
    fpoll_loop(g, 42, 43, "L_fs")
    g(f"""
    s_lshl_b32 s5, {s(sB)}, 4
    s_add_u32 s5, s5, {WT}
    v_lshl_add_u32 v41, v40, 12, s5
    buffer_load_dword v44, v41, {s(rWS,4)}, 0 offen sc1
    v_and_b32 v46, 3, {v(LANE)}
    v_lshlrev_b32 v46, 1, v46
    v_mul_u32_u24 v40, 0x3100, v40
    s_waitcnt vmcnt(0)
    v_and_b32 v47, 0x7ff, v44
    v_add_lshl_u32 v47, v47, v46, 3
    v_add_u32 {v(STA)}, v40, v47
    v_bfe_u32 v47, v44, 16, 11
    v_sub_u32 v47, v47, v46
    v_lshlrev_b32 {v(STB)}, 8, v47
L_round:
    v_ashrrev_i32 v40, 8, {v(STB)}
    """)
    for u in range(3):
        g(f"""
        v_cmp_lt_i32 vcc, {8*u}, v40
        s_and_b64 exec, exec, vcc
        s_cbranch_execz L_rl
        buffer_load_dwordx4 {v(64+4*u,4)}, {v(STA)}, {s(rWS,4)}, {s(sK1)} offen offset:{64*u} sc1
        """)
    g(f"""
L_rl:
    s_mov_b64 exec, -1
    v_mov_b32 v41, 1
    s_waitcnt lgkmcnt(0)
    s_barrier
    s_waitcnt vmcnt(0)
    """)
    for r in range(6):
        k = 8*(r//2) + (r % 2)
        g(f"""
        v_and_b32 v42, {1 << r}, {v(STB)}
        v_cmp_lt_i32 vcc, {k}, v40
        v_cmp_eq_u32 {s(sEX,2)}, 0, v42
        v_mov_b32 v{80+r}, -1
        v_bfe_u32 v{86+r}, v{64+2*r}, 16, 3
        s_and_b64 exec, vcc, {s(sEX,2)}
        v_lshlrev_b32 v42, 2, v{86+r}
        ds_add_rtn_u32 v{80+r}, v42, v41 offset:{GC}
        s_mov_b64 exec, -1
        """)
    g(f"s_movk_i32 s5, {CAP}")
    for r in range(6):
        g(f"""
        s_waitcnt lgkmcnt(5)
        v_cmp_gt_u32 vcc, s5, v{80+r}
        v_mad_u32_u24 v42, v{86+r}, s5, v{80+r}
        v_lshlrev_b32 v42, 4, v42
        s_mov_b64 exec, vcc
        ds_write_b64 v42, v[{64+2*r}:{65+2*r}] offset:{RA}
        v_or_b32 {v(STB)}, {1 << r}, {v(STB)}
        s_mov_b64 exec, -1
        v_add_u32 v{80+r}, 1, v{80+r}
        """)
    g(f"""
    v_max3_u32 v42, v80, v81, v82
    v_max3_u32 v42, v42, v83, v84
    v_max_u32 v42, v42, v85
    v_cmp_ge_u32 vcc, s5, v42
    v_add_u32 v43, 0xc0, {v(STA)}
    v_add_u32 v44, 0xffffffe8, v40
    v_lshlrev_b32 v44, 8, v44
    v_cndmask_b32 {v(STA)}, {v(STA)}, v43, vcc
    v_mov_b32 v45, 0
    v_cndmask_b32 {v(STB)}, {v(STB)}, v44, vcc
    v_cmp_lt_i32 vcc, 0xff, {v(STB)}
    s_mov_b64 exec, vcc
    ds_write_b32 v45, v41 offset:{MORE}
    s_mov_b64 exec, -1
    s_lshl_b32 s5, {s(sG)}, 2
    v_mov_b32 v42, s5
    s_waitcnt lgkmcnt(0)
    s_barrier
    ds_read_b32 v43, v42 offset:{GC}
    ds_read_b32 v44, v45 offset:{MORE}
    s_lshl_b32 s5, {s(sHALF)}, 6
    v_add_u32 v40, s5, {v(LANE)}
    s_mul_i32 s6, {s(sG)}, {CAP}
    s_add_u32 s6, s6, {RA//16}
    v_add_lshl_u32 v41, v40, s6, 4
    s_mov_b32 s31, {PR}
    s_waitcnt lgkmcnt(0)
    v_readfirstlane_b32 {s(sN)}, v43
    v_readfirstlane_b32 {s(sMORE)}, v44
    s_min_u32 {s(sN)}, {s(sN)}, {CAP}
L_geo:
    v_cmp_gt_u32 vcc, {s(sN)}, v40
    s_mov_b64 exec, vcc
    s_cbranch_execz L_geod
    ds_read_b64 v[64:65], v41
    s_waitcnt lgkmcnt(0)
    """)
    geo_issue(g, 64, 68)
    geo_pre(g, 64, 68, 48)
    g("s_waitcnt lgkmcnt(0)")
    geo_math(g, 64, 68, 48)
    g(f"""
    ds_write_b128 v41, v[48:51]
    v_add_u32 v40, 0x80, v40
    v_add_u32 v41, 0x800, v41
    s_branch L_geo
L_geod:
    s_mov_b64 exec, -1
    """)
    group_addr(g)
    g("v_mov_b32 v44, 0\nv_mov_b32 v45, 0x3fff\nv_mov_b64 v[46:47], 0")
    pads(g, s(sN))
    g("s_branch L_go")
    g(f"""
L_empty:
    s_cmp_lg_u32 {s(sRND)}, 0
    s_cbranch_scc1 L_done
    {ZACC}
    s_branch L_done
L_again:
    s_mov_b32 {s(sRND)}, 1
    s_barrier
    v_lshlrev_b32 v40, 2, {v(LANE)}
    v_mov_b32 v41, 0
    s_mov_b64 exec, 0x1ff
    ds_write_b32 v40, v41 offset:{GC}
    s_mov_b64 exec, -1
    """)
    posrun(g, f"s_min_u32 s7, {s(sWV)}, 14\ns_mul_i32 s7, s7, 5", 5, 42)
    g("s_branch L_round\nL_codeend:")

def idxreads(toff): return "\n".join(f"ds_read_u16 {v(DP+2*u)}, {v(AIDX)} offset:{toff*512+u*128+4}" for u in range(4))
def dma(): return "\n".join(f"buffer_load_dwordx4 {v(DP+2*u,2)}, {s(rBPG,4)}, 0 idxen offen offset:{u*USTR} sc1 lds" for u in range(4))
def wread(S, b): return f"""ds_read_u16_d16_hi {v(S+2)}, {v(AWS)} offset:{256*b+6}
    ds_read_u16_d16_hi {v(S+3)}, {v(AWS)} offset:{256*b+134}"""
OPT = {}
def sxad(S):
    if OPT.get("pka", 1): return f"v_pk_add_f32 {v(S+2,2)}, {v(S+2,2)}, {v(AWS,2)} op_sel:[0,1] op_sel_hi:[1,1]"
    return f"""v_xad_u32 {v(S+2)}, {v(S+2)}, {v(MYN)}, {v(AWS)}
    v_xad_u32 {v(S+3)}, {v(S+3)}, {v(MYN)}, {v(AWS)}"""
def sxad1(S):
    if OPT.get("pka", 1): return f"v_add_f32 {v(S+2)}, {v(S+2)}, {v(MYN)}\nv_add_f32 {v(S+3)}, {v(S+3)}, {v(MYN)}"
    return sxad(S)
def strd(S, b):
    return f"""ds_read_b64_tr_b16 {v(S,2)}, {v(S+2)} offset:{256*b+8}
    ds_read_b64_tr_b16 {v(S+2,2)}, {v(S+3)} offset:{256*b+136}"""
def sread(S, b, pk=True): return (sxad(S) if pk else sxad1(S)) + "\n" + strd(S, b)
def incs():
    if OPT.get("pka", 1):
        return f"v_pk_add_f32 {v(AWX,2)}, {v(AWX,2)}, s[8:9]\nv_pk_add_f32 {v(AWS,2)}, {v(AWS,2)}, s[8:9]"
    return f"v_add_u32 {v(AWX)}, 0x200, {v(AWX)}\nv_add_u32 {v(AWS)}, 0x200, {v(AWS)}\nv_add_u32 {v(AIDX)}, 0x200, {v(AIDX)}"
def xread(toff):
    return f"""s_mov_b32 exec_lo, 0
    ds_read_b128 {v(X,4)}, {v(XA)}
    s_not_b64 exec, exec
    ds_read_b128 {v(X,4)}, {v(AWX)} offset:{512*toff}
    s_mov_b64 exec, -1"""
def LG(n): return f"s_waitcnt lgkmcnt({n})\n"

def half(g, Dc, o, ins, n=8):
    def at(k):
        if k in ins: g(ins[k])
    pk = n == 8 and not g.opt.get("nopk")
    for i in range(n):
        at(f"E{i}"); g(f"v_exp_f32 {v(T+i)}, {v(Dc+o+i)}")
    at("A")
    if pk:
        for i in range(4): g(f"v_pk_add_f32 {v(T+2*i,2)}, {v(T+2*i,2)}, 1.0 op_sel_hi:[1,0]")
    else:
        for i in range(n): g(f"v_add_f32 {v(T+i)}, 1.0, {v(T+i)}")
    at("A4"); at("P1")
    for i in range(n):
        at(f"R{i}"); g(f"v_rcp_f32 {v(T+i)}, {v(T+i)}")
    at("M")
    if pk:
        for i in range(4): g(f"v_pk_mul_f32 {v(T+2*i,2)}, {v(T+2*i,2)}, {v(Dc+o+2*i,2)}")
    else:
        for i in range(n): g(f"v_mul_f32 {v(T+i)}, {v(T+i)}, {v(Dc+o+i)}")
    at("P2")
    for i in range(n//2): g(f"v_cvt_pk_bf16_f32 {v(Dc+o+i)}, {v(T+2*i)}, {v(T+2*i+1)}")
    if n == 4: g(f"v_mov_b64 {v(Dc+o+2,2)}, 0")
    at("Z")

segB1 = mf32(A1, D1+8, SB, A1); segA1 = mf32(A1, D1, SA, A1)
segB0 = mf32(A0, D0+8, SB, A0); segA0 = mf32(A0, D0, SA, A0)
def st1(D, Y): return mf32(D, X, Y, '0'), mf32(D, F0, SEL0, D), mf32(D, F1, SEL1, D)

def tile(g, full):
    f1, a1, b1 = st1(D1, Y1); f0, a0, b0 = st1(D0, Y0)
    ni = 4 if full else 0
    h0 = {"E2": LG(0) + segB1, "A4": sxad(SA), "P1": wread(SB, 1) + "\n" + strd(SA, 0), "R0": f1,
          "P2": f"ds_read_u16 {v(XA)}, {v(AWX)} offset:518\n" + a1}
    h1 = {"E2": LG(1) + b1, "A4": sxad(SB), "P1": strd(SB, 1), "R0": segA0,
          "P2": LG(2) + xread(1) + ("\n" + idxreads(2) if full else "")}
    h2 = {"E2": LG(2+ni) + segB0,
          "P1": f"s_waitcnt vmcnt(0) lgkmcnt({ni})\nds_read_b128 {v(F0,4)}, {v(FA0)}\nds_read_b128 {v(F1,4)}, {v(FA1)}", "R0": f0,
          "P2": LG(0) + a0}
    h3 = {"E2": b0, "A4": incs(),
          "P1": f"ds_read_b128 {v(F0,4)}, {v(FA0)} offset:64\nds_read_b128 {v(F1,4)}, {v(FA1)} offset:64", "R0": segA1,
          "P2": wread(SA, 0) + ("\n" + LG(2) + dma() + f"\ns_sub_u32 {s(sNT)}, {s(sNT)}, 1" if full else "")}
    if g.opt.get("w1e"):
        h0["P2"] = LG(0) + h0["P2"]; h1["E2"] = b1
    half(g, D0, 0, h0); half(g, D0, 8, h1); half(g, D1, 0, h2); half(g, D1, 8, h3)

def last(g, nq):
    f1, a1, b1 = st1(D1, Y1)
    if nq >= 3:
        nb = 8 if nq == 4 else 4
        half(g, D0, 0, {"E2": LG(0) + segB1, "A4": sxad(SA), "P1": wread(SB, 1) + "\n" + strd(SA, 0), "R0": f1, "R3": a1})
        half(g, D0, 8, {"E0": LG(0) + b1, "A4": sxad(SB) if nb == 8 else sxad1(SB), "P1": strd(SB, 1), "R0": segA0}, nb)
        half(g, D1, 0, {"E2": LG(0) + segB0})
        half(g, D1, 8, {"E2": segA1}, nb)
        g("s_nop 1\n" + segB1)
    elif nq == 2:
        half(g, D0, 0, {"E0": LG(0) + segB1, "E3": f1, "A4": sxad(SA), "P1": strd(SA, 0), "R0": a1, "R3": b1})
        half(g, D1, 0, {"E2": LG(0) + segA0})
        g("s_nop 1\n" + segA1)
    else:
        half(g, D0, 0, {"E0": LG(0) + segB1, "E2": f1, "A": sread(SA, 0, False), "P1": a1, "R2": b1}, 4)
        g("s_nop 2")
        half(g, D1, 0, {"E2": LG(0) + segA0}, 4)
        g("s_nop 1\n" + segA1)

def prio(g, p, lab):
    lo = g.opt.get("band", 1)
    if lo > 3: return
    g(f"s_cmp_lt_u32 {s(sSLOT)}, {lo}\ns_cbranch_scc1 {lab}\ns_setprio {p}\n{lab}:")

ZACC = "\n".join(f"v_mov_b64 {v(A0+2*i,2)}, 0" for i in range(16))
def mainloop(g):
    f0, a0, b0 = st1(D0, Y0)
    g(f"""
    s_cmp_eq_u32 {s(sNT)}, 0
    s_cbranch_scc1 L_empty
    s_setprio 3
    """)
    prio(g, 2, "L_pr2")
    g(f"""
    {g.opt.get("stag","")}
    {idxreads(0)}
    ds_read_u16 {v(XA)}, {v(AWX)} offset:6
    s_mov_b32 m0, {s(sSTG)}
    s_waitcnt lgkmcnt(1)
    {dma()}
    {idxreads(1)}
    s_waitcnt lgkmcnt(4)
    {xread(0)}
    v_bfe_u32 v56, {v(LANE)}, 4, 1
    v_and_b32 v57, 3, {v(LANE)}
    v_lshl_add_u32 v56, v56, 2, v57
    v_lshlrev_b32 v56, 20, v56
    v_sub_f32 {v(MYN)}, {v(AWS)}, v56
    s_movk_i32 s8, 0x200
    s_movk_i32 s9, 0x200
    v_mov_b64 {v(SB,2)}, 0
    v_mov_b64 {v(SB+2,2)}, 0
    v_mov_b64 {v(D1+8,2)}, 0
    v_mov_b64 {v(D1+10,2)}, 0
    s_add_u32 s5, {s(sN)}, 31
    s_bfe_u32 {s(sK2)}, s5, 0x20003
    s_cmp_lg_u32 {s(sRND)}, 0
    s_cbranch_scc1 L_nz
    {ZACC}
L_nz:
    s_waitcnt lgkmcnt(0)
    {f0}
    s_waitcnt vmcnt(0)
    ds_read_b128 {v(F0,4)}, {v(FA0)}
    ds_read_b128 {v(F1,4)}, {v(FA1)}
    s_waitcnt lgkmcnt(1)
    {a0}
    s_waitcnt lgkmcnt(0)
    {b0}
    ds_read_b128 {v(F0,4)}, {v(FA0)} offset:64
    ds_read_b128 {v(F1,4)}, {v(FA1)} offset:64
    {wread(SA, 0)}
    s_waitcnt lgkmcnt(2)
    s_nop 4
    s_cmp_lt_u32 {s(sNT)}, 2
    s_cbranch_scc1 L_last
    {dma()}
    s_sub_u32 {s(sNT)}, {s(sNT)}, 3
    s_cbranch_scc1 L_pen
L_tile:
    """)
    tile(g, True)
    g(f"""
    s_cbranch_scc0 L_tile
L_pen:
    """)
    prio(g, 1, "L_pr1")
    tile(g, False)
    g("L_last:")
    prio(g, 0, "L_pr0")
    g(f"""
    s_cmp_eq_u32 {s(sK2)}, 0
    s_cbranch_scc1 L_last1
    s_cmp_eq_u32 {s(sK2)}, 1
    s_cbranch_scc1 L_last2
    s_cmp_eq_u32 {s(sK2)}, 2
    s_cbranch_scc1 L_last3
    """)
    last(g, 4); g("s_branch L_done\nL_last3:")
    last(g, 3); g("s_branch L_done\nL_last2:")
    last(g, 2); g("s_branch L_done\nL_last1:")
    last(g, 1)
    g(f"""
L_done:
    s_setprio 3
    s_cmp_lg_u32 {s(sMORE)}, 0
    s_cbranch_scc1 L_again
    """)
    g.stamp(8)

def epilogue(g):
    stf = g.opt.get("outflag", "sc1")
    TP = f"""v_and_b32 v29, 3, {v(LANE)}
    v_and_b32 v30, 60, {v(LANE)}
    v_lshl_add_u32 v29, v29, 6, v30
    ds_bpermute_b32 v2, v29, v2""" if g.opt.get("tp", 1) else ""
    g(f"""
    s_mov_b32 s7, 0xeeeeeeee
    s_mov_b32 exec_lo, s7
    s_mov_b32 exec_hi, 0
    buffer_load_ushort v76, {v(EA1)}, {s(rPOS,4)}, 0 offen
    s_mov_b64 exec, -1
    v_lshrrev_b32 v71, 5, {v(LANE)}
    s_lshl_b32 s6, {s(sHALF)}, 7
    v_lshl_add_u32 v71, v71, 3, s6
    ds_read2_b64 v[40:43], v71 offset0:{WX//8} offset1:{WX//8+2}
    ds_read2_b64 v[44:47], v71 offset0:{WX//8+4} offset1:{WX//8+6}
    ds_read2_b64 v[48:51], v71 offset0:{WX//8+8} offset1:{WX//8+10}
    ds_read2_b64 v[52:55], v71 offset0:{WX//8+12} offset1:{WX//8+14}
    v_xor_b32 v68, 16, {v(EA0)}
    v_xor_b32 v69, 64, {v(EA0)}
    v_xor_b32 v70, 0x50, {v(EA0)}
    s_lshl_b32 s6, {s(sSLOT)}, 2
    v_mov_b32 v72, s6
    v_mov_b32 v73, 1
    s_mov_b32 s10, 0x11111111
    s_mov_b32 s11, 0x11111111
    """)
    for i in range(16): g(f"v_cvt_pk_bf16_f32 {v(A0+i)}, {v(A0+2*i)}, {v(A0+2*i+1)}")
    g(f"""
    s_mov_b64 exec, s[10:11]
    ds_write_b128 {v(EA0)}, {v(A0,4)}
    ds_write_b128 v68, {v(A0+4,4)}
    ds_write_b128 v69, {v(A0+8,4)}
    ds_write_b128 v70, {v(A0+12,4)}
    s_mov_b64 exec, 1
    ds_add_u32 v72, v73 offset:{SLOTC}
    s_mov_b64 exec, -1
    s_setprio {g.opt.get("posprio", 0)}
    s_waitcnt lgkmcnt(5)
    {mf32(80, 40, A0, '0')}
    s_lshl_b32 s6, {s(sG)}, 2
    v_mov_b32 v72, s6
    {mf32(80, 44, A0+4, 80)}
    s_lshl_b32 s6, {s(sPW)}, 7
    v_lshl_add_u32 v77, {v(LANE)}, 2, s6
    {mf32(80, 48, A0+8, 80)}
    v_xor_b32 v78, 0x80, v77
    {mf32(80, 52, A0+12, 80)}
    s_mov_b32 exec_hi, 0
    s_nop 7
    s_nop 2
    ds_write_b32 v77, v80 offset:{PP}
    s_mov_b64 exec, 1
    ds_add_rtn_u32 v79, v72, v73 offset:{PAIRC}
    s_waitcnt lgkmcnt(0)
    v_readfirstlane_b32 s6, v79
    s_mov_b64 exec, -1
    s_cmp_eq_u32 s6, 0
    s_cbranch_scc1 L_nopos
    ds_read_b32 v81, v78 offset:{PP}
    s_mov_b32 exec_lo, s7
    s_mov_b32 exec_hi, 0
    s_waitcnt vmcnt(0) lgkmcnt(0)
    v_add_f32 v80, v80, v81
    v_lshlrev_b32 v76, 16, v76
    v_fmac_f32 v76, {NLN2:#x}, v80
    v_cvt_pk_bf16_f32 v76, v76, v76
    buffer_store_short v76, {v(EA1)}, {s(rOUTP,4)}, 0 offen {stf}
    s_mov_b64 exec, -1
L_nopos:
    s_cmp_lg_u32 {s(sSLOT)}, 0
    s_cbranch_scc1 L_exit
    s_setprio 3
    s_waitcnt vmcnt(0)
    s_lshl_b32 s5, {s(sPW)}, 14
    s_add_u32 s5, s5, {WIMG}
    v_lshlrev_b32 v12, 4, {v(LANE)}
    """)
    for f in range(16):
        if f and f % 4 == 0: g("s_add_u32 s5, s5, 4096")
        g(f"buffer_load_dwordx4 {v(64+4*f,4)}, v12, {s(rWS,4)}, s5 offen offset:{(f%4)*1024} sc1")
    g(f"""
    v_lshrrev_b32 v13, 4, {v(LANE)}
    v_and_b32 v14, 15, {v(LANE)}
    v_lshrrev_b32 v15, 3, v14
    v_and_b32 v16, 7, v14
    v_xor_b32 v17, v13, v14
    v_lshlrev_b32 v17, 4, v17
    v_lshl_add_u32 v17, v14, 8, v17
    v_add_u32 v4, {YR}, v17
    v_xor_b32 v5, 64, v4
    v_xor_b32 v6, 0x80, v4
    v_xor_b32 v7, 0xc0, v4
    v_and_b32 v17, 4, v16
    v_add_u32 v17, v17, v16
    v_lshl_add_u32 v17, v15, 2, v17
    v_xor_b32 v18, v13, v17
    v_lshlrev_b32 v18, 4, v18
    v_lshl_add_u32 v8, v17, 8, v18
    v_add_u32 v8, {HR}, v8
    v_xor_b32 v9, 64, v8
    v_xor_b32 v10, 0x80, v8
    v_xor_b32 v11, 0xc0, v8
    s_lshl_b32 s5, {s(sPW)}, 6
    v_xor_b32 v3, s5, v8
    v_lshl_add_u32 v17, v16, 3, v15
    v_lshlrev_b32 v17, 16, v17
    v_lshl_add_u32 v17, v13, 4, v17
    s_lshl_b32 s6, {s(sB)}, 8
    s_add_u32 s6, s6, s5
    v_add_u32 v2, s6, v17
    v_mov_b32 v1, 0
    {TP}
    s_waitcnt vmcnt(0)
    """)
    stf = g.opt.get("outflag", "sc1")
    RES = (64, 72, 96, 104)
    for sl in range(4):
        o = sl*4096
        g(f"""
        ds_read_b128 v[12:15], v8 offset:{o}
        ds_read_b128 v[16:19], v9 offset:{o}
        ds_read_b128 v[20:23], v10 offset:{o}
        ds_read_b128 v[24:27], v11 offset:{o}
        """)
        for ks in range(4):
            g(f"s_waitcnt lgkmcnt({3-ks})")
            for a in range(2): g(mf16(32+8*sl+4*a, 64+32*a+4*ks, 12+4*ks, '0' if ks == 0 else 32+8*sl+4*a))
    for sl in range(4):
        if sl: g("s_waitcnt lgkmcnt(4)")
        for i in range(8): g(f"ds_read_u16_d16_hi v{RES[sl]+i}, v3 offset:{sl*4096+2*i}")
    g(f"s_mov_b32 s10, {NLOG2E:#x}\ns_mov_b32 s11, {NLOG2E:#x}")
    tp = g.opt.get("tp", 1)
    sleeps = g.opt.get("sleeps", (1, 4, 1, 1))
    for sl in range(4):
        o = sl*4096; H = 32+8*sl; R = RES[sl]
        g(f"""
        s_mov_b32 {s(sCNT)}, 0x1000000
L_sw{sl}:
        ds_read_b32 v28, v1 offset:{SLOTC+4*sl}
        s_waitcnt lgkmcnt(0)
        v_readfirstlane_b32 s5, v28
        s_cmp_ge_u32 s5, 4
        s_cbranch_scc1 L_sg{sl}
        s_sleep {sleeps[sl]}
        s_sub_u32 {s(sCNT)}, {s(sCNT)}, 1
        s_cbranch_scc0 L_sw{sl}
L_sg{sl}:
        ds_read_b128 v[12:15], v4 offset:{o}
        ds_read_b128 v[16:19], v5 offset:{o}
        ds_read_b128 v[20:23], v6 offset:{o}
        ds_read_b128 v[24:27], v7 offset:{o}
        """)
        for ks in range(4):
            g(f"s_waitcnt lgkmcnt({3-ks})")
            for a in range(2): g(mf16(H+4*a, 64+32*a+16+4*ks, 12+4*ks, H+4*a))
        g("s_nop 6")
        for i in range(8): g(f"v_exp_f32 v{12+i}, v{H+i}")
        for i in range(4):
            g(f"v_pk_fma_f32 v[{12+2*i}:{13+2*i}], v[{12+2*i}:{13+2*i}], s[10:11], s[10:11]")
        for i in range(8): g(f"v_rcp_f32 v{12+i}, v{12+i}")
        for i in range(4): g(f"v_pk_fma_f32 v[{R+2*i}:{R+1+2*i}], v[{H+2*i}:{H+1+2*i}], v[{12+2*i}:{13+2*i}], v[{R+2*i}:{R+1+2*i}]")
        for i in range(4):
            g(f"v_cvt_pk_bf16_f32 v{R+i}, v{R+2*i}, v{R+1+2*i}")
            if tp: g(f"ds_bpermute_b32 v{R+i}, v29, v{R+i}")
        if tp: g("s_waitcnt lgkmcnt(0)")
        g(f"buffer_store_dwordx4 v[{R}:{R+3}], v2, {s(rOUT,4)}, 0 offen {stf}")
        if sl < 3: g("v_add_u32 v2, 0x20000, v2")
    g(f"""
L_exit:
    s_lshl_b32 s5, s2, 4
    s_add_u32 s5, s5, {s(sWV)}
    s_cmp_lg_u32 s5, 4
    s_cbranch_scc1 L_exit2
    v_mov_b32 v1, {WEP}
    v_mov_b32 v2, {s(sNON)}
    s_mov_b64 exec, 1
    buffer_store_dword v2, v1, {s(rWS,4)}, 0 offen {stf}
L_exit2:
    """)
    if g.stamps:
        g.stamp(9)
        g(f"""
        s_waitcnt vmcnt(0)
        s_memrealtime s[96:97]
        s_lshl_b32 s5, s2, 4
        s_add_u32 s5, s5, {s(sWV)}
        s_lshl_b32 s5, s5, 6
        s_add_u32 s5, s5, {WST}
        v_mov_b32 v1, s5
        s_waitcnt lgkmcnt(0)
        s_mov_b64 exec, 1
        """)
        for i in range(11): g(f"v_mov_b32 v2, s{76+2*i}\nglobal_store_dword v1, v2, {s(pWS,2)} offset:{4*i} {'sc1' if g.opt.get('amp2') else ''}")
    if g.opt.get("amp2"):
        wv, idx, mode, arg = g.opt["amp2"]
        g(f"""
        s_cmp_lg_u32 s2, 77
        s_cbranch_scc1 L_end
        s_cmp_lg_u32 {s(sWV)}, 8
        s_cbranch_scc1 L_end
        s_mov_b64 exec, -1
L_aw:
        s_memrealtime s[6:7]
        s_waitcnt lgkmcnt(0)
        s_sub_u32 s6, s6, s76
        s_cmp_lt_u32 s6, 5000
        s_cbranch_scc1 L_aw
        v_lshlrev_b32 v1, 10, {v(LANE)}
        v_add_u32 v1, {WST}, v1
        """)
        for k in range(4):
            g(f"global_load_dword v{4+k}, v1, {s(pWS,2)} offset:{wv*64+4*idx} sc1\nglobal_load_dword v{8+k}, v1, {s(pWS,2)} offset:{8*64} sc1\nv_add_u32 v1, 0x10000, v1")
        g("s_waitcnt vmcnt(0)\nv_min_u32 v8, v8, v9\nv_min3_u32 v8, v8, v10, v11\ns_mov_b32 s8, -1\ns_mov_b32 s9, 0\ns_mov_b32 s10, 0")
        for l in range(64): g(f"v_readlane_b32 s11, v8, {l}\ns_min_u32 s8, s8, s11")
        for k in range(4):
            for l in range(64):
                if mode == "cls" and l % 8 != arg: continue
                g(f"v_readlane_b32 s11, v{4+k}, {l}\ns_sub_u32 s11, s11, s8")
                if mode in ("max", "cls"): g("s_max_u32 s9, s9, s11")
                elif mode == "cnt": g(f"s_cmp_gt_u32 s11, {arg}\ns_addc_u32 s9, s9, 0")
                elif mode == "mean": g("s_add_u32 s9, s9, s11")
        if mode == "mean": g("s_lshr_b32 s9, s9, 8")
        g(f"""
        s_min_u32 s9, s9, 5000
        s_mul_i32 s5, s9, {200 if mode == "cnt" else 50}
        s_add_u32 s5, s5, 10000
L_amp2:
        s_memrealtime s[6:7]
        s_waitcnt lgkmcnt(0)
        s_sub_u32 s6, s6, s76
        s_cmp_lt_u32 s6, s5
        s_cbranch_scc1 L_amp2
        """)
    if g.opt.get("amp"):
        i0, i1, wg, wv, amp = g.opt["amp"]
        g(f"""
        s_cmp_lg_u32 s2, {wg}
        s_cbranch_scc1 L_end
        s_cmp_lg_u32 {s(sWV)}, {wv}
        s_cbranch_scc1 L_end
        s_sub_u32 s5, s{76+2*i1}, s{76+2*i0}
        s_min_u32 s5, s5, 10000
        s_mul_i32 s5, s5, {amp}
L_amp:
        s_memrealtime s[6:7]
        s_waitcnt lgkmcnt(0)
        s_sub_u32 s6, s6, s76
        s_cmp_lt_u32 s6, s5
        s_cbranch_scc1 L_amp
        """)
    g("L_end:\ns_endpgm")

def build(stamps=False, opt=None):
    g = G(stamps, opt); OPT.clear(); OPT.update(g.opt)
    phase1(g); phase2(g); mainloop(g); epilogue(g); slowpath(g)
    body = g.text()
    off = g.opt.get("wsoff", 0)
    body = body.replace("    WSADD\n", f"    s_add_u32 s28, s28, {off}\n    s_addc_u32 s29, s29, 0\n" if off else "")
    if off: body = body.replace(f"s_add_u32 s5, s5, {WST}\n", f"s_add_u32 s5, s5, {WST}\n    s_sub_u32 s28, s28, {off}\n    s_subb_u32 s29, s29, 0\n")
    if g.opt.get("align", 1):
        body, st = align.align(body, [("L_tile", "L_done")])
        if g.opt.get("v"): print("align", st)
    txt = HEAD + f"; @launch grid=(256,1,1) block=(1024,1,1) lds={LDS}\n"
    txt += f'''.amdgcn_target "amdgcn-amd-amdhsa--gfx950"
.text
.globl {NAME}_kernel
.p2align 8
.type {NAME}_kernel,@function
{NAME}_kernel:
{body}.section .rodata,"a"
.p2align 6
.amdhsa_kernel {NAME}_kernel
  .amdhsa_next_free_vgpr 128
  .amdhsa_next_free_sgpr 102
  .amdhsa_accum_offset 128
  .amdhsa_group_segment_fixed_size 0
  .amdhsa_kernarg_size 88
  .amdhsa_user_sgpr_count 2
  .amdhsa_user_sgpr_kernarg_segment_ptr 1
  .amdhsa_system_sgpr_workgroup_id_x 1
  .amdhsa_float_denorm_mode_32 3
.end_amdhsa_kernel
'''
    for b in hazard.check(body): print("HAZARD need %d have %d:\n   %s\n   %s" % (b[2], b[3], b[0], b[1]))
    return txt

if __name__ == "__main__":
    opt = eval(sys.argv[3]) if len(sys.argv) > 3 else {}
    open(sys.argv[1], "w").write(build(stamps=len(sys.argv) > 2 and sys.argv[2] == "st", opt=opt))
```
